```python
import torch

def _softmax(x, axis=-1):
    return torch.softmax(x, dim=axis)
def _gelu(x):
    return torch.nn.functional.gelu(x, approximate="tanh")
def _silu(x):
    return torch.nn.functional.silu(x)
def _sigmoid(x):
    return torch.sigmoid(x)
def _layernorm(x, axis=-1, eps=1e-5):
    m = x.mean(dim=axis, keepdim=True)
    v = x.var(dim=axis, keepdim=True, unbiased=False)
    return (x - m) / torch.sqrt(v + eps)
def _scatter_add(tgt, idx, src, axis=0):
    return tgt.clone().index_add_(axis, idx, src)
def _segment_sum(src, seg, n):
    out = torch.zeros((n,) + src.shape[1:], dtype=src.dtype)
    return out.index_add_(0, seg, src)
def _pad(x, pw):
    flat = tuple(v for pair in reversed(pw) for v in pair)
    return torch.nn.functional.pad(x, flat)

kernel_name = 'recurrent_scan__grouped_kv_mqa__moe_arch_mod__prompt'

def setup_inputs():

    _w = (lambda a: (lambda t: t.to(torch.bfloat16) if t.is_floating_point() else t)(torch.as_tensor(a)))
    def _A_setup():
        B, S, D, H = 1, 2048, 640, 32
        Dh = D // H
        return {
            "x": _w((lambda *s: torch.randn(*s, dtype=torch.bfloat16) * 0.05)(B, S, D)),
            "wq": _w((lambda *s: torch.randn(*s, dtype=torch.bfloat16) * 0.05)(D, H * Dh)),
            "wk": _w((lambda *s: torch.randn(*s, dtype=torch.bfloat16) * 0.05)(D, Dh)),
            "wv": _w((lambda *s: torch.randn(*s, dtype=torch.bfloat16) * 0.05)(D, Dh)),
            "wo": _w((lambda *s: torch.randn(*s, dtype=torch.bfloat16) * 0.05)(H * Dh, D)),
        }
    _A_in = _A_setup()

    def _B_setup():
        B, S, D, F, C = 1, 2048, 640, 1728, 1
        return {
            "x": _w((lambda *s: torch.randn(*s, dtype=torch.bfloat16) * 0.05)(B, S, D)),
            "w_r": _w((lambda *s: torch.randn(*s, dtype=torch.bfloat16) * 1.6)(D)),
            "w_gate": _w((lambda *s: torch.randn(*s, dtype=torch.bfloat16) * 0.1)(D, F)),
            "w_up": _w((lambda *s: torch.randn(*s, dtype=torch.bfloat16) * 0.1)(D, F)),
            "w_down": _w((lambda *s: torch.randn(*s, dtype=torch.bfloat16) * 0.1)(F, D)),
        }
    _B_in = _B_setup()

    return {
        "A_x": _A_in["x"],
        "A_wq": _A_in["wq"],
        "A_wk": _A_in["wk"],
        "A_wv": _A_in["wv"],
        "A_wo": _A_in["wo"],
        "B_x": _B_in["x"],
        "B_w_r": _B_in["w_r"],
        "B_w_gate": _B_in["w_gate"],
        "B_w_up": _B_in["w_up"],
        "B_w_down": _B_in["w_down"],
    }

def reference(A_x, A_wq, A_wk, A_wv, A_wo, B_x, B_w_r, B_w_gate, B_w_up, B_w_down):
    def _A_ref(x, wq, wk, wv, wo):
        B, S, D = x.shape
        H = 32
        Dh = D // H
        q = (lambda x, *d: x.permute(*d))((x @ wq).reshape(B, S, H, Dh), 0, 2, 1, 3)
        k = x @ wk
        v = x @ wv
        scores = torch.einsum("bhqd,bkd->bhqk", q, k) * (Dh ** -0.5)
        p = _softmax(scores, axis=-1)
        o = torch.einsum("bhqk,bkd->bhqd", p, v)
        return (lambda x, *d: x.permute(*d))(o, 0, 2, 1, 3).reshape(B, S, H * Dh) @ wo

    def _B_ref(x, w_r, w_gate, w_up, w_down):
        B, S, D = x.shape
        C = 1
        r = x @ w_r
        idx = torch.argsort(-r, axis=-1)[:, :C]
        idx_e = (lambda x, n, axis: torch.repeat_interleave(x, n, dim=axis))(idx.reshape(B, C, 1), D, axis=2)
        x_sel = (lambda x, i, axis: torch.take_along_dim(x, i, dim=axis))(x, idx_e, axis=1)
        g = _silu(x_sel @ w_gate)
        u = x_sel @ w_up
        y = (g * u) @ w_down
        r_sel = _sigmoid((lambda x, i, axis: torch.take_along_dim(x, i, dim=axis))(r, idx, axis=1))
        y = y * r_sel.reshape(B, C, 1)
        b_off = (torch.arange(B) * S).reshape(B, 1)
        flat_idx = (idx + b_off).reshape(B * C)
        zero = (x * 0.0).reshape(B * S, D)
        upd = _scatter_add(zero, flat_idx, y.reshape(B * C, D), axis=0)
        return x + upd.reshape(B, S, D)

    x = A_x
    xn = _layernorm(x, axis=-1)
    s = _A_ref(xn, A_wq, A_wk, A_wv, A_wo)
    g = _silu(_B_ref(xn, B_w_r, B_w_gate, B_w_up, B_w_down))
    return x + s * g
```

```python
import re

TRANS = ("v_exp_f32", "v_log_f32", "v_rcp_f32", "v_rsq_f32", "v_sqrt_f32", "v_sin_f32", "v_cos_f32",
         "v_exp_f16", "v_rcp_f16", "v_rcp_iflag_f32")

def regs_of(tok):
    tok = tok.strip()
    neg = tok.startswith('-')
    if neg: tok = tok[1:]
    if tok.startswith('|') and tok.endswith('|'): tok = tok[1:-1]
    m = re.fullmatch(r'([vsa])(\d+)', tok)
    if m: return {(m.group(1), int(m.group(2)))}
    m = re.fullmatch(r'([vsa])\[(\d+):(\d+)\]', tok)
    if m: return {(m.group(1), i) for i in range(int(m.group(2)), int(m.group(3)) + 1)}
    if tok in ('vcc', 'vcc_lo', 'vcc_hi'): return {('vcc', 0)}
    if tok in ('exec', 'exec_lo', 'exec_hi'): return {('exec', 0)}
    if tok == 'm0': return {('m0', 0)}
    return set()

class Ins:
    __slots__ = ('text', 'op', 'ops', 'mods', 'kind', 'wr', 'rd', 'label', 'target', 'passes', 'A', 'B', 'C', 'D',
                 'isdpp', 'store_data', 'addr', 'lds_dma', 'nopn', 'sel')
    def __init__(self, text):
        self.text = text
        self.label = None; self.target = None
        self.wr = set(); self.rd = set(); self.kind = 'other'; self.passes = 0
        self.isdpp = False; self.store_data = set(); self.lds_dma = False; self.nopn = 0; self.sel = set()
        t = text.split(';')[0].strip()
        if t.endswith(':'):
            self.label = t[:-1]; self.kind = 'label'; self.op = ''; return
        if t.startswith('.') or not t:
            self.kind = 'directive'; self.op = ''; return
        parts = t.split(None, 1)
        self.op = op = parts[0]
        rest = parts[1] if len(parts) > 1 else ''
        toks = [x.strip() for x in rest.split(',')] if rest else []
        mods = ''
        if toks:
            last = toks[-1].split(None, 1)
            if len(last) > 1:
                toks[-1] = last[0]; mods = last[1]
        self.ops = toks; self.mods = mods
        R = [regs_of(x) for x in toks]
        if op.startswith('v_mfma'):
            self.kind = 'mfma'
            self.passes = 8 if '32x32x16' in op else 4 if '16x16x32' in op else None
            assert self.passes, op
            self.D, self.A, self.B, self.C = R[0], R[1], R[2], R[3]
            self.wr = set(R[0]); self.rd = R[1] | R[2] | R[3]
        elif op.startswith('v_'):
            self.kind = 'valu'
            self.isdpp = ('dpp' in op) or any(k in mods for k in ('row_', 'quad_perm', 'wave_'))
            if op.startswith('v_permlane') and 'swap' in op:
                self.wr = R[0] | R[1]; self.rd = R[0] | R[1]
            elif op.startswith('v_cmpx'):
                self.wr = {('exec', 0)} | (R[0] if len(R) == 3 else set()); self.rd = set().union(*R[-2:])
            elif op.startswith(('v_add_co', 'v_sub_co', 'v_subrev_co', 'v_addc_co', 'v_subb_co')):
                self.wr = R[0] | R[1]; self.rd = set().union(*R[2:])
            elif op.startswith('v_writelane'):
                self.wr = R[0]; self.rd = R[0] | R[1] | R[2]; self.sel = R[2]
            elif op.startswith('v_readlane'):
                self.wr = R[0]; self.rd = R[1] | R[2]; self.sel = R[2]
            elif op == 'v_nop':
                pass
            else:
                self.wr = set(R[0]); self.rd = set().union(*R[1:]) if len(R) > 1 else set()
                if op.startswith('v_cndmask') and len(R) == 3: self.rd |= {('vcc', 0)}
                if op.startswith(('v_fmac', 'v_mac', 'v_dot2c', 'v_pk_fmac')): self.rd |= R[0]
                if self.isdpp or 'sdwa' in op: self.rd |= R[0]
        elif op.startswith(('buffer_', 'global_')):
            self.kind = 'vmem'
            islds = ('lds' in mods.split()) or ('_lds_' in op)
            self.lds_dma = islds
            if islds:
                self.rd = set().union(*R) | {('m0', 0)}
            elif 'load' in op:
                self.wr = set(R[0]); self.rd = set().union(*R[1:])
                if 'd16' in op: self.rd |= R[0]
            elif 'store' in op:
                self.rd = set().union(*R)
                data = R[0] if op.startswith('buffer_') else R[1]
                if len(data) >= 3: self.store_data = data
            else:
                raise ValueError(text)
        elif op.startswith('ds_'):
            self.kind = 'ds'
            if 'read' in op or 'permute' in op or 'swizzle' in op:
                self.wr = set(R[0]); self.rd = set().union(*R[1:])
            else:
                self.rd = set().union(*R)
        elif op.startswith(('s_load', 's_buffer_load', 's_memtime', 's_memrealtime')):
            self.kind = 'smem'
            self.wr = set(R[0]); self.rd = set().union(*R[1:]) if len(R) > 1 else set()
        elif op.startswith('s_'):
            self.kind = 'salu'
            if op == 's_nop':
                self.nopn = int(toks[0], 0)
            elif op.startswith(('s_cbranch', 's_branch')):
                self.target = toks[0]; self.kind = 'branch'
            elif op.startswith(('s_cmp', 's_bitcmp', 's_waitcnt', 's_barrier', 's_endpgm', 's_setprio', 's_sleep')):
                self.rd = set().union(*R) if R else set()
            else:
                self.wr = set(R[0]) if R else set(); self.rd = set().union(*R[1:]) if len(R) > 1 else set()
                if 'saveexec' in op: self.wr |= {('exec', 0)}
        else:
            raise ValueError("unknown instr: " + text)

    def ws(self):
        if self.kind in ('label', 'directive'): return 0
        if self.op == 's_nop': return self.nopn + 1
        return 1

def vg(s): return {r for r in s if r[0] in ('v', 'a')}
def sg(s): return {r for r in s if r[0] in ('s', 'vcc')}

def need(p, c):
    n = 0
    if p.kind == 'valu':
        pw_v = vg(p.wr); pw_s = sg(p.wr)
        isdot = p.op.startswith('v_dot')
        if c.kind == 'mfma' and pw_v & c.rd: n = max(n, 3 if isdot else 2)
        if c.kind == 'valu':
            if c.isdpp and pw_v & c.rd: n = max(n, 2)
            if c.op.startswith('v_permlane') and pw_v & c.rd: n = max(n, 2)
            if c.op.startswith(('v_readlane', 'v_readfirstlane')) and pw_v & c.rd: n = max(n, 1)
            if p.op.startswith(TRANS) and not c.op.startswith(TRANS) and pw_v & c.rd: n = max(n, 1)
            if p.op.startswith(TRANS) and c.op.startswith(TRANS) and pw_v & c.rd: n = max(n, 1)
            if pw_s & c.rd: n = max(n, 2)
            if pw_s & c.sel: n = max(n, 4)
            if ('exec', 0) in p.wr:
                if c.isdpp: n = max(n, 5)
                if c.op.startswith(('v_readlane', 'v_readfirstlane', 'v_writelane', 'v_permlane')): n = max(n, 4)
            if isdot:
                if c.op == p.op:
                    ab = set().union(*[regs_of(x) for x in c.ops[1:3]])
                    if pw_v & ab: n = max(n, 3)
                elif pw_v & (c.rd | c.wr): n = max(n, 3)
            if ('op_sel' in p.mods or 'sdwa' in p.op) and pw_v & (c.rd | c.wr): n = max(n, 1)
        if c.kind in ('vmem', 'ds') and isdot and pw_v & c.rd: n = max(n, 3)
        if c.kind == 'vmem' and pw_s & c.rd: n = max(n, 5)
        if c.kind == 'mfma' and ('exec', 0) in p.wr: n = max(n, 4)
        if c.kind in ('salu', 'branch', 'smem') and pw_s & c.rd: n = max(n, 1)
    elif p.kind == 'mfma':
        big = {4: 8, 8: 12}[p.passes]
        if c.kind == 'mfma':
            if p.D & (c.A | c.B): n = max(n, big)
            if p.D & c.C:
                if not (p.D == c.C and p.passes == c.passes): n = max(n, big - 2)
            elif p.D & c.D and not (p.D == c.D and p.passes == c.passes): n = max(n, big)
        elif c.kind in ('valu', 'vmem', 'ds'):
            if p.D & (c.rd | c.wr): n = max(n, big)
            if c.kind == 'valu' and p.C & c.wr: n = max(n, {4: 3, 8: 7}[p.passes])
            if c.kind in ('vmem', 'ds') and p.C & c.wr: n = max(n, {4: 3, 8: 7}[p.passes])
    elif p.kind == 'vmem':
        if p.store_data and p.store_data & c.wr: n = max(n, 2 if c.kind in ('valu', 'mfma') else 1)
    elif p.kind == 'salu':
        if ('m0', 0) in p.wr and c.kind == 'vmem' and c.lds_dma: n = max(n, 1)
    return n

class Asm:
    def __init__(self):
        self.L = []
    def __call__(self, s):
        for l in s.split('\n'):
            l = l.strip()
            if l: self.L.append(l)
    def label(self, n): self.L.append(n + ':')
    def comment(self, s): self.L.append('; ' + s)

def pad_hazards(lines, verbose=False):
    ins = [Ins(l) for l in lines]
    inserted = []
    changed = True
    it = 0
    while changed:
        changed = False; it += 1
        assert it < 3000
        labels = {x.label: i for i, x in enumerate(ins) if x.label}
        preds = {}
        for i, x in enumerate(ins):
            if x.kind == 'branch' and x.target in labels:
                preds.setdefault(labels[x.target], []).append(i)
        def fallthrough_ok(j):
            return ins[j].op not in ('s_branch', 's_endpgm')
        i = 0
        while i < len(ins):
            c = ins[i]
            if c.kind in ('label', 'directive'): i += 1; continue
            worst = 0
            stack = [(i, 0)]
            seen = {}
            while stack:
                j, d = stack.pop()
                ps = []
                if j > 0 and fallthrough_ok(j - 1): ps.append(j - 1)
                if j in preds: ps += preds[j]
                for pj in ps:
                    p = ins[pj]
                    if seen.get(pj, 99) <= d: continue
                    seen[pj] = d
                    if p.kind not in ('label', 'directive'):
                        nd = need(p, c)
                        if nd > d: worst = max(worst, nd - d)
                    d2 = d + p.ws()
                    if d2 < 12: stack.append((pj, d2))
            if worst > 0:
                nop = Ins(f's_nop {worst - 1}')
                ins.insert(i, nop)
                inserted.append((c.text, worst))
                changed = True
                break
            i += 1
    return [x.text for x in ins], inserted

def lint_waitcnt(lines):
    errs = []
    vm = []
    lg = []
    for n, l in enumerate(lines):
        x = Ins(l)
        if x.kind in ('label', 'directive'):
            continue
        if x.op == 's_endpgm' or x.op == 's_branch':
            vm = []; lg = []; continue
        if x.op == 's_waitcnt':
            m = re.search(r'vmcnt\((\d+)\)', l)
            if m:
                k = int(m.group(1)); vm = vm[len(vm) - k:] if k < len(vm) else vm
                if k == 0: vm = []
            m = re.search(r'lgkmcnt\((\d+)\)', l)
            if m:
                k = int(m.group(1))
                if k == 0: lg = []
                else:
                    if any(s for _, _, s in lg): errs.append((n, l, 'lgkmcnt(N>0) with SMEM outstanding'))
                    lg = lg[len(lg) - k:] if k < len(lg) else lg
            continue
        touched = x.rd | x.wr
        for regs, t in vm:
            if regs & touched: errs.append((n, l, 'pending vmem: ' + t))
        for regs, t, s in lg:
            if regs & touched: errs.append((n, l, 'pending lgkm: ' + t))
        if x.kind == 'vmem':
            vm.append((set(x.wr), l))
            if len(vm) > 63: errs.append((n, l, 'vmcnt overflow'))
        elif x.kind == 'ds':
            lg.append((set(x.wr), l, False))
            if len(lg) > 15: errs.append((n, l, 'lgkmcnt overflow'))
        elif x.kind == 'smem':
            lg.append((set(x.wr), l, True))
    return errs
```

```python
WS_Q = 0
WS_O = 0x280000
WS_KV = 0x500000
WS_KEY = 0x540000
WS_ST = 0x541000
WS_MISC = 0x545000
WS_YP = 0x546000
WS_SIZE = 0x600000
TILE_B = 2624
def vr(a, n): return f"v[{a}:{a+n-1}]"
def sr(a, n): return f"s[{a}:{a+n-1}]"
import struct
def f32(x): return "0x%08x" % struct.unpack("<I", struct.pack("<f", x))[0]
```

```python
from asmlib import Asm
from common import *
import math

def rbf(A, dst, src):
    A(f"v_cvt_pk_bf16_f32 v{dst}, v{src}, v{src}")
    A(f"v_lshlrev_b32 v{dst}, 16, v{dst}")

def dma_voffs(A, VW, lane, t0, s_col):
    for i in range(5):
        q, rho, c, h = t0, t0+1, t0+2, t0+3
        A(f"""
        v_add_u32 v{q}, {64*i}, v{lane}
        v_mul_u32_u24 v{rho}, 6554, v{q}
        v_lshrrev_b32 v{rho}, 16, v{rho}
        v_mul_u32_u24 v{c}, 10, v{rho}
        v_sub_u32 v{c}, v{q}, v{c}
        v_lshrrev_b32 v{h}, 4, v{rho}
        v_bfe_u32 v{q}, v{rho}, 2, 2
        v_and_b32 v{rho}, 3, v{rho}
        v_lshl_add_u32 v{rho}, v{h}, 2, v{rho}
        v_lshl_add_u32 v{rho}, v{q}, 3, v{rho}
        v_mul_u32_u24 v{rho}, 1280, v{rho}
        v_lshl_add_u32 v{rho}, v{c}, 4, v{rho}
        v_add_u32 v{VW+i}, s{s_col}, v{rho}
        """)

def gen_k1(prefetch=True):
    A = Asm()
    L_WQ, L_E, L_WR, L_ONES, L_CS = 0, 102400, 128000, 130048, 132096
    LDS = 132608
    X = 8; T = 88; EF = 108; SF = 112; ACC = 116
    CS0 = 136; CS1 = 140; AE = 144; CSE = 148; AS = 152
    D2 = 156; ONE = 160; VW = 164; VT = 169
    VE = 174; VS = 175; VX = 176; VL16 = 177; VL4 = 178; SWR = 179
    WR0 = 180; t0 = 188; CSX = 208
    NV = 220
    lane, g, l15 = 2, 3, 4
    A.label("proj_kernel")
    A(f"""
    s_cmp_ge_u32 s2, 256
    s_cbranch_scc1 K1_END
    s_load_dwordx4 s[28:31], s[0:1], 0
    s_load_dwordx4 s[32:35], s[0:1], 16
    s_load_dwordx2 s[36:37], s[0:1], 48
    s_load_dwordx2 s[38:39], s[0:1], 96
    s_getpc_b64 s[40:41]
    """)
    A.label("K1_PC")
    A(f"""
    v_lshrrev_b32 v1, 6, v0
    v_and_b32 v{lane}, 63, v0
    """)
    if prefetch:
        A(f"""
        v_lshlrev_b32 v5, 7, v0
        v_min_u32 v5, CODE_END-K1_PC-4, v5
        global_load_dword v6, v5, s[40:41]
        """)
    A(f"""
    v_readfirstlane_b32 s26, v1
    s_and_b32 s3, s2, 7
    s_lshr_b32 s27, s2, 3
    s_and_b32 s25, s27, 7
    s_lshr_b32 s27, s27, 3
    s_lshl_b32 s24, s3, 2
    s_add_u32 s24, s24, s27
    v_lshrrev_b32 v{g}, 4, v{lane}
    v_and_b32 v{l15}, 15, v{lane}
    v_lshlrev_b32 v{VL16}, 4, v{lane}
    v_lshlrev_b32 v{VL4}, 2, v{lane}
    s_mul_i32 s42, s25, 160
    v_mul_u32_u24 v{VX}, 1280, v{l15}
    v_lshl_add_u32 v{VX}, v{g}, 4, v{VX}
    """)
    dma_voffs(A, VW, lane, t0, 42)
    A(f"""
    v_lshrrev_b32 v{t0}, 2, v{lane}
    v_and_b32 v{t0+1}, 3, v{lane}
    v_mul_u32_u24 v{t0+2}, 160, v{t0}
    v_lshl_add_u32 v{t0+2}, v{t0+1}, 3, v{t0+2}
    """)
    for i in range(5):
        A(f"""
        s_add_u32 s{44+i}, s26, {i}
        s_cmp_ge_u32 s{44+i}, 5
        s_cselect_b32 s43, 5, 0
        s_sub_u32 s{44+i}, s{44+i}, s43
        s_lshl_b32 s{44+i}, s{44+i}, 5
        v_add_u32 v{VT+i}, s{44+i}, v{t0+2}
        """)
    A(f"""
    v_and_b32 v{t0}, 3, v{t0}
    v_lshl_add_u32 v{t0}, v{g}, 3, v{t0}
    v_mul_u32_u24 v{t0}, 40, v{t0}
    v_lshlrev_b32 v{t0+1}, 3, v{t0+1}
    s_cmp_lt_u32 s25, 2
    s_cselect_b32 s43, 0xffff, 0
    s_cselect_b32 s49, 0, 32
    s_add_u32 s49, s49, {L_E}
    v_and_b32 v{t0+1}, s43, v{t0+1}
    v_add3_u32 v{VE}, v{t0}, v{t0+1}, s49
    v_cmp_eq_u32 vcc, 0, v{l15}
    v_mov_b32 v{t0}, {L_ONES}
    v_mov_b32 v{t0+1}, {L_WR}
    v_cndmask_b32 v{t0}, v{t0}, v{t0+1}, vcc
    v_lshl_add_u32 v{VS}, v{g}, 4, v{t0}
    """)
    for j in range(4): A(f"v_mov_b32 v{ONE+j}, 0x3f803f80")
    for j in range(4): A(f"v_mov_b32 v{D2+j}, 0")
    A(f"""
    v_lshlrev_b32 v{t0}, 3, v0
    v_add_u32 v{t0}, {L_ONES}, v{t0}
    ds_write_b64 v{t0}, {vr(ONE,2)}
    s_mov_b32 s6, 2621440
    s_mov_b32 s7, 0x20000
    s_mov_b32 s10, 819200
    s_mov_b32 s11, 0x20000
    s_cmp_lt_u32 s25, 4
    s_cselect_b32 s14, 25600, 0
    s_mov_b32 s15, 0x20000
    s_mov_b32 s18, 1280
    s_mov_b32 s19, 0x20000
    s_mov_b32 s22, {WS_SIZE}
    s_mov_b32 s23, 0x20000
    s_mul_i32 s50, s24, 81920
    s_mul_i32 s51, s26, 20480
    s_add_u32 s50, s50, s51
    s_mul_i32 s51, s26, 40960
    s_mul_i32 s52, s26, 5120
    s_mul_i32 s53, s26, 1280
    s_and_b32 s54, s26, 1
    s_lshl_b32 s54, s54, 10
    s_add_u32 s55, s54, {L_WR}
    s_bitcmp1_b32 s25, 0
    s_waitcnt lgkmcnt(0)
    s_mov_b64 s[4:5], s[28:29]
    s_mov_b64 s[8:9], s[30:31]
    s_cselect_b64 s[12:13], s[34:35], s[32:33]
    s_mov_b64 s[16:17], s[36:37]
    s_mov_b64 s[20:21], s[38:39]
    s_mov_b32 m0, s55
    s_nop 0
    buffer_load_dwordx4 v{VL16}, s[16:19], s54 offen lds
    """)
    for s in range(5):
        for k in range(4):
            ks = 4*s + k
            A(f"buffer_load_dwordx4 {vr(X+4*ks,4)}, v{VX}, s[4:7], s50 offen offset:{ks*64}")
        for i in range(5):
            A(f"""
            s_add_u32 m0, s52, {L_WQ + s*20480 + i*1024}
            s_nop 0
            buffer_load_dwordx4 v{VW+i}, s[8:11], s51 offen lds
            """)
        A(f"""
        s_add_u32 m0, s53, {L_E}
        s_add_u32 s51, s51, {4*40960}
        buffer_load_dwordx4 v{VL16}, s[12:15], s53 offen lds
        buffer_load_dword v{VL4}, s[12:15], s53 offen offset:1024 lds
        s_add_u32 s53, s53, 5120
        """)
    def rd_tile(i, n):
        if n == 10: A(f"v_add_u32 v{VT+i}, 51200, v{VT+i}")
        o = (n % 10) * 5120
        A(f"ds_read_b64_tr_b16 {vr(T+4*i,2)}, v{VT+i} offset:{o}")
        A(f"ds_read_b64_tr_b16 {vr(T+4*i+2,2)}, v{VT+i} offset:{o+2560}")
    def rd_e(n):
        A(f"ds_read_b64_tr_b16 {vr(EF,2)}, v{VE} offset:{n*1280}")
        A(f"ds_read_b64_tr_b16 {vr(EF+2,2)}, v{VE} offset:{n*1280+160}")
    def rd_s(n):
        A(f"ds_read_b128 {vr(SF,4)}, v{VS} offset:{n*64}")
    def mf(d, a, b, first):
        A(f"v_mfma_f32_16x16x32_bf16 {vr(d,4)}, {vr(a,4)}, {vr(b,4)}, {'0' if first else vr(d,4)}")
    A(f"""
    v_lshlrev_b32 v{t0}, 5, v{lane}
    v_add_u32 v{t0}, {L_WR}, v{t0}
    s_waitcnt vmcnt(44) lgkmcnt(0)
    s_barrier
    ds_read_b128 {vr(WR0,4)}, v{t0}
    ds_read_b128 {vr(WR0+4,4)}, v{t0} offset:16
    """)
    for i in range(5): rd_tile(i, 0)
    rd_e(0); rd_s(0)
    for n in range(20):
        last = n == 19
        if n % 4 == 3 and not last:
            s = (n + 1) // 4
            A(f"s_waitcnt vmcnt({(4-s)*11})")
            A("s_barrier")
        xb = X + 4*n
        cnt = 11
        for i in range(5):
            A(f"s_waitcnt lgkmcnt({cnt})")
            mf(ACC+4*i, T+4*i, xb, n == 0)
            if i == 0: mf(CS0, T, ONE, n == 0)
            if i == 1: mf(CS1, T+4, ONE, n == 0)
            if not last: rd_tile(i, n+1)
            else: cnt -= 2
            if i >= 1: A(f"v_dot2_f32_bf16 v{D2+i-1}, v{xb+i-1}, v{xb+i-1}, v{D2+i-1}")
            if n == 0 and i == 2:
                A(f"v_mov_b32 v{SWR}, 0")
                for j in range(8): A(f"v_dot2_f32_bf16 v{SWR}, v{WR0+j}, v{ONE}, v{SWR}")
            if n == 1 and i in (1, 2, 3, 4):
                A(f"v_add_f32_dpp v{SWR}, v{SWR}, v{SWR} row_ror:{[8,4,2,1][i-1]} row_mask:0xf bank_mask:0xf")
            if n == 2 and i == 1:
                A(f"v_mov_b32 v{t0}, v{SWR}")
            if n == 2 and i == 2:
                A(f"v_permlane16_swap_b32 v{t0}, v{SWR}")
                A(f"v_add_f32 v{SWR}, v{SWR}, v{t0}")
                A(f"v_mov_b32 v{t0}, v{SWR}")
            if n == 2 and i == 3:
                A(f"v_permlane32_swap_b32 v{t0}, v{SWR}")
                A(f"v_add_f32 v{SWR}, v{SWR}, v{t0}")
        A(f"s_waitcnt lgkmcnt({cnt})")
        mf(AE, EF, xb, n == 0)
        mf(CSE, EF, ONE, n == 0)
        if not last:
            rd_e(n+1)
            A("s_waitcnt lgkmcnt(12)")
        else:
            A("s_waitcnt lgkmcnt(0)")
        mf(AS, SF, xb, n == 0)
        if not last: rd_s(n+1)
    mean, mbf, rden, var, rc = t0, t0+2, t0+3, t0+4, t0+5
    vg16 = t0+6; va = t0+7; q0 = t0+8
    A(f"""
    v_lshlrev_b32 v{vg16}, 4, v{g}
    s_lshl_b32 s43, s26, 6
    s_add_u32 s43, s43, {L_CS}
    v_add_u32 v{va}, s43, v{vg16}
    ds_write_b128 v{va}, {vr(CS0,4)}
    ds_write_b128 v{va}, {vr(CS1,4)} offset:64
    v_add_f32 v{D2}, v{D2}, v{D2+1}
    v_add_f32 v{D2+2}, v{D2+2}, v{D2+3}
    v_add_f32 v{D2}, v{D2}, v{D2+2}
    v_mov_b32 v{D2+1}, v{D2}
    v_permlane16_swap_b32 v{D2}, v{D2+1}
    v_add_f32 v{D2}, v{D2}, v{D2+1}
    v_mov_b32 v{D2+1}, v{D2}
    v_permlane32_swap_b32 v{D2}, v{D2+1}
    v_add_f32 v{D2}, v{D2}, v{D2+1}
    v_mul_f32 v{mean}, {f32(1/640)}, v{AS+1}
    s_waitcnt lgkmcnt(0)
    s_barrier
    """)
    for i in range(2, 5):
        A(f"""
        s_lshl_b32 s43, s{44+i}, 1
        s_add_u32 s43, s43, {L_CS}
        v_add_u32 v{va}, s43, v{vg16}
        ds_read_b128 {vr(CSX+4*(i-2),4)}, v{va}
        """)
    rbf(A, mbf, mean)
    A(f"""
    v_mul_f32 v{var}, {f32(1/640)}, v{D2}
    v_fma_f32 v{var}, -v{mean}, v{mean}, v{var}
    v_max_f32 v{var}, 0, v{var}
    """)
    rbf(A, var, var)
    A(f"v_add_f32 v{var}, {f32(1e-5)}, v{var}")
    rbf(A, var, var)
    A(f"v_sqrt_f32 v{var}, v{var}")
    rbf(A, var, var)
    A(f"""
    v_rcp_f32 v{rden}, v{var}
    v_mul_u32_u24 v{va}, 1280, v{l15}
    v_lshl_add_u32 v{va}, v{g}, 3, v{va}
    v_mul_f32 v{rc}, {f32(20**-0.5 * math.log2(math.e))}, v{rden}
    s_add_u32 s50, s50, s42
    """)
    for i in range(5):
        cs = [CS0, CS1, CSX, CSX+4, CSX+8][i]
        if i == 2: A("s_waitcnt lgkmcnt(0)")
        for r in range(4): A(f"v_fma_f32 v{q0+r}, -v{mbf}, v{cs+r}, v{ACC+4*i+r}")
        for r in range(4): A(f"v_mul_f32 v{q0+r}, v{q0+r}, v{rc}")
        A(f"""
        v_cvt_pk_bf16_f32 v{ACC+4*i}, v{q0}, v{q0+1}
        v_cvt_pk_bf16_f32 v{ACC+4*i+1}, v{q0+2}, v{q0+3}
        s_add_u32 s43, s50, s{44+i}
        buffer_store_dwordx2 {vr(ACC+4*i,2)}, v{va}, s[20:23], s43 offen
        """)
    A(f"""
    s_cmp_ge_u32 s25, 4
    s_cbranch_scc1 K1_CB45
    """)
    for r in range(4): A(f"v_fma_f32 v{q0+r}, -v{mbf}, v{CSE+r}, v{AE+r}")
    for r in range(4): A(f"v_mul_f32 v{q0+r}, v{q0+r}, v{rden}")
    A(f"""
    v_cvt_pk_bf16_f32 v{q0}, v{q0}, v{q0+1}
    v_cvt_pk_bf16_f32 v{q0+1}, v{q0+2}, v{q0+3}
    s_lshr_b32 s43, s26, 1
    s_lshl_b32 s56, s24, 1
    s_add_u32 s43, s43, s56
    s_mul_i32 s43, s43, {TILE_B}
    s_add_u32 s43, s43, {WS_KV}
    s_and_b32 s56, s26, 1
    s_bitcmp1_b32 s25, 0
    s_cbranch_scc1 K1_V
    s_lshl_b32 s57, s56, 4
    v_add_u32 v{va}, s57, v{l15}
    v_lshrrev_b32 v{q0+2}, 1, v{g}
    v_and_b32 v{q0+3}, 1, v{g}
    v_lshl_add_u32 v{q0+2}, v{q0+2}, 5, v{va}
    v_lshlrev_b32 v{q0+2}, 4, v{q0+2}
    v_lshl_add_u32 v{q0+2}, v{q0+3}, 3, v{q0+2}
    v_lshlrev_b32 v{va}, 3, v{va}
    v_add_u32 v{va}, 1024, v{va}
    s_cmp_eq_u32 s25, 0
    s_cselect_b64 vcc, -1, 0
    v_cndmask_b32 v{va}, v{va}, v{q0+2}, vcc
    buffer_store_dwordx2 {vr(q0,2)}, v{va}, s[20:23], s43 offen
    s_endpgm
    """)
    A.label("K1_V")
    A(f"""
    s_mul_i32 s56, s56, 672
    s_add_u32 s43, s43, s56
    v_and_b32 v{va}, 3, v{l15}
    v_lshrrev_b32 v{q0+2}, 3, v{l15}
    v_lshl_add_u32 v{va}, v{q0+2}, 2, v{va}
    v_lshlrev_b32 v{va}, 1, v{va}
    v_bfe_u32 v{q0+2}, v{l15}, 2, 1
    v_mul_u32_u24 v{q0+2}, 336, v{q0+2}
    v_add_u32 v{va}, v{va}, v{q0+2}
    v_lshlrev_b32 v{q0+2}, 6, v{g}
    s_cmp_eq_u32 s25, 1
    s_cselect_b32 s56, 0xffff, 0
    s_cselect_b32 s57, 0, 256
    v_and_b32 v{q0+2}, s56, v{q0+2}
    v_add3_u32 v{va}, v{va}, v{q0+2}, s57
    buffer_store_short v{q0}, v{va}, s[20:23], s43 offen offset:1280
    buffer_store_short_d16_hi v{q0}, v{va}, s[20:23], s43 offen offset:1296
    buffer_store_short v{q0+1}, v{va}, s[20:23], s43 offen offset:1312
    buffer_store_short_d16_hi v{q0+1}, v{va}, s[20:23], s43 offen offset:1328
    s_cbranch_scc1 K1_END
    buffer_store_short v{ONE}, v{va}, s[20:23], s43 offen offset:1344
    s_endpgm
    """)
    A.label("K1_CB45")
    A(f"""
    s_cmp_eq_u32 s25, 4
    s_cbranch_scc1 K1_KEY
    s_cmp_eq_u32 s25, 5
    s_cbranch_scc0 K1_END
    s_lshl_b32 s43, s24, 9
    s_lshl_b32 s56, s26, 7
    s_add_u32 s43, s43, s56
    s_add_u32 s43, s43, {WS_ST}
    v_lshlrev_b32 v{va}, 3, v{l15}
    buffer_store_dwordx2 {vr(mbf,2)}, v{va}, s[20:23], s43 offen
    s_endpgm
    """)
    A.label("K1_KEY")
    A(f"""
    v_fma_f32 v{q0}, -v{mbf}, v{SWR}, v{AS}
    v_mul_f32 v{q0}, v{q0}, v{rden}
    v_cvt_pk_bf16_f32 v{q0+1}, v{q0}, v{q0}
    v_ashrrev_i32 v{q0+2}, 31, v{q0+1}
    v_or_b32 v{q0+2}, 0x80000000, v{q0+2}
    v_xor_b32 v{q0+1}, v{q0+1}, v{q0+2}
    v_and_b32 v{q0+1}, 0xffff0000, v{q0+1}
    s_lshl_b32 s43, s24, 6
    s_lshl_b32 s56, s26, 4
    s_add_u32 s43, s43, s56
    s_sub_u32 s43, 0xffff, s43
    v_sub_u32 v{q0+2}, s43, v{l15}
    v_or_b32 v{q0+1}, v{q0+1}, v{q0+2}
    """)
    for sh in (8, 4, 2, 1):
        A(f"v_max_u32_dpp v{q0+1}, v{q0+1}, v{q0+1} row_ror:{sh} row_mask:0xf bank_mask:0xf")
    A(f"""
    s_lshl_b32 s43, s24, 4
    s_lshl_b32 s56, s26, 2
    s_add_u32 s43, s43, s56
    s_add_u32 s43, s43, {WS_KEY}
    v_mov_b32 v{va}, 0
    s_mov_b64 exec, 1
    buffer_store_dword v{q0+1}, v{va}, s[20:23], s43 offen
    """)
    A.label("K1_END")
    A("s_endpgm")
    return A, LDS, NV
```

```python
from asmlib import Asm
from common import *
from k1 import rbf
import math

SLOT = 45056
GRP = 16 * TILE_B
L_G = 3 * SLOT
L_P = L_G + 20480
LDS2 = L_P + 2048
LOG2E = math.log2(math.e)

def gen_k2():
    A = Asm()
    SA, SB, OA, OB, PA, PB = 16, 32, 48, 64, 80, 88
    QA0, QA1, QB0, QB1 = 96, 100, 104, 108
    KB = [112, 120]; VB = [128, 136]
    vK0, vK1, vV = 144, 145, 146
    gK0, gK1, gV = 147, 148, 149
    vo, vo2 = 150, 151
    NV = 152
    lane, head, hh = 2, 3, 4
    def mf(d, a, b, c=None):
        A(f"v_mfma_f32_32x32x16_bf16 {vr(d,16)}, {vr(a,4)}, {vr(b,4)}, {'0' if c is None else vr(c,16)}")
    A.label("attn_kernel")
    A(f"""
    s_cmp_ge_u32 s2, 256
    s_cbranch_scc1 K2_END
    s_load_dwordx2 s[4:5], s[0:1], 96
    s_load_dwordx2 s[8:9], s[0:1], 0
    s_load_dwordx4 s[28:31], s[0:1], 56
    s_load_dwordx2 s[16:17], s[0:1], 72
    v_lshrrev_b32 v1, 6, v0
    v_and_b32 v{lane}, 63, v0
    v_readfirstlane_b32 s3, v1
    s_mov_b32 s6, {WS_SIZE}
    s_mov_b32 s7, 0x20000
    s_and_b32 s20, s2, 7
    s_lshr_b32 s21, s2, 3
    v_lshlrev_b32 v{vK0}, 4, v{lane}
    s_cmp_ge_u32 s3, 4
    s_cbranch_scc1 K2_HELP
    s_lshl_b32 s22, s20, 8
    s_lshl_b32 s23, s21, 3
    s_add_u32 s22, s22, s23
    s_lshl_b32 s23, s3, 1
    s_add_u32 s22, s22, s23
    s_mul_i32 s22, s22, 1280
    s_mov_b32 s23, {WS_KV}
    v_and_b32 v{head}, 31, v{lane}
    v_lshrrev_b32 v{hh}, 5, v{lane}
    v_mul_u32_u24 v5, 40, v{head}
    v_lshl_add_u32 v6, v{hh}, 30, v5
    v_lshl_add_u32 v{vo}, v{hh}, 3, v5
    v_lshl_add_u32 v5, v{hh}, 4, v5
    v_lshlrev_b32 v{vK1}, 3, v{head}
    v_min_u32 v{vV}, 20, v{head}
    v_lshlrev_b32 v{vV}, 4, v{vV}
    v_mul_u32_u24 v7, 336, v{hh}
    v_add_u32 v{vV}, v{vV}, v7
    s_waitcnt lgkmcnt(0)
    buffer_load_dwordx4 {vr(KB[0],4)}, v{vK0}, s[4:7], s23 offen
    buffer_load_dwordx2 {vr(KB[0]+4,2)}, v{vK1}, s[4:7], s23 offen offset:1024
    buffer_load_dwordx4 {vr(QA0,4)}, v5, s[4:7], s22 offen
    buffer_load_dwordx2 {vr(QA1,2)}, v6, s[4:7], s22 offen offset:32
    buffer_load_dwordx4 {vr(QB0,4)}, v5, s[4:7], s22 offen offset:1280
    buffer_load_dwordx2 {vr(QB1,2)}, v6, s[4:7], s22 offen offset:1312
    buffer_load_dwordx4 {vr(VB[0],4)}, v{vV}, s[4:7], s23 offen offset:1280
    buffer_load_dwordx4 {vr(VB[0]+4,4)}, v{vV}, s[4:7], s23 offen offset:1952
    v_mov_b32 v{vo2}, v6
    v_mov_b32 v{gK0}, v{vK0}
    v_mov_b32 v{gK1}, v{vK1}
    v_mov_b32 v{gV}, v{vV}
    v_cmp_eq_u32 vcc, 0, v{hh}
    v_mov_b32 v7, 0x3f80
    v_cndmask_b32 v{KB[0]+6}, 0, v7, vcc
    v_cndmask_b32 v{KB[1]+6}, 0, v7, vcc
    """)
    for r in (KB[0]+7, KB[1]+7, QA1+2, QA1+3, QB1+2, QB1+3): A(f"v_mov_b32 v{r}, 0")
    for r in range(32): A(f"v_mov_b32 v{OA+r}, 0")
    for r in range(8): A(f"v_mov_b32 v{PB+r}, 0")
    for r in range(8): A(f"v_mov_b32 v{VB[1]+r}, 0")
    A("s_waitcnt vmcnt(4)")
    mf(SA, KB[0], QA0); mf(SA, KB[0]+4, QA1, SA)
    A("s_waitcnt vmcnt(2)")
    mf(SB, KB[0], QB0); mf(SB, KB[0]+4, QB1, SB)
    def vmax16(t, S, init=None):
        if init is None:
            A(f"v_max3_f32 v{t}, v{S}, v{S+1}, v{S+2}")
            for r in range(3, 15, 2): A(f"v_max3_f32 v{t}, v{t}, v{S+r}, v{S+r+1}")
            A(f"v_max_f32 v{t}, v{t}, v{S+15}")
        else:
            for r in range(0, 16, 2): A(f"v_max3_f32 v{t}, v{t}, v{S+r}, v{S+r+1}")
    def swapmax(t, t2):
        A(f"""
        v_mov_b32 v{t2}, v{t}
        v_permlane32_swap_b32 v{t}, v{t2}
        v_max_f32 v{t}, v{t}, v{t2}
        """)
    vmax16(8, SA); swapmax(8, 9)
    A(f"v_cvt_pk_bf16_f32 v{QA1+2}, -v8, 0")
    mf(SA, KB[0], QA0); mf(SA, KB[0]+4, QA1, SA)
    vmax16(10, SB); swapmax(10, 11)
    A(f"v_cvt_pk_bf16_f32 v{QB1+2}, -v10, 0")
    A(f"""
    s_mov_b32 s24, 0
    s_mov_b32 s26, {-2*SLOT & 0xffffffff}
    s_mov_b32 s27, {SLOT}
    s_waitcnt vmcnt(0)
    s_barrier
    """)
    A.label("K2_LOOP")
    def phase(S, P, mfs, reads, pre=None):
        e = [f"v_exp_f32 v{S+r}, v{S+r}" for r in range(16)]
        c = [f"v_cvt_pk_bf16_f32 v{P+r}, v{S+2*r}, v{S+2*r+1}" for r in range(8)]
        if pre: A(pre)
        mfs[0]()
        for r_ in reads: A(r_)
        for x in e[0:4]: A(x)
        mfs[1]()
        for x in (e[4], e[5], c[0], e[6], c[1], e[7]): A(x)
        mfs[2]()
        for x in (e[8], e[9], c[2], e[10], c[3], e[11]): A(x)
        mfs[3]()
        for x in (e[12], e[13], c[4], e[14], c[5], e[15], c[6], c[7]): A(x)
    for t in range(16):
        p = t & 1; q = p ^ 1
        o = ((t + 1) % 16) * TILE_B
        pre = None
        if t == 15:
            pre = f"""
            s_cmp_eq_u32 s24, 2
            s_cselect_b32 s25, s26, s27
            s_waitcnt lgkmcnt(0)
            s_barrier
            v_add_u32 v{vK0}, s25, v{vK0}
            v_add_u32 v{vK1}, s25, v{vK1}
            v_add_u32 v{vV}, s25, v{vV}
            """
        phase(SA, PA,
              [lambda: mf(SB, KB[p], QB0), lambda: mf(SB, KB[p]+4, QB1, SB),
               lambda: mf(OB, VB[q], PB, OB), lambda: mf(OB, VB[q]+4, PB+4, OB)],
              [f"ds_read_b128 {vr(KB[q],4)}, v{vK0} offset:{o}",
               f"ds_read_b64 {vr(KB[q]+4,2)}, v{vK1} offset:{o+1024}"], pre)
        phase(SB, PB,
              [lambda: mf(SA, KB[q], QA0), lambda: mf(SA, KB[q]+4, QA1, SA),
               lambda: mf(OA, VB[p], PA, OA), lambda: mf(OA, VB[p]+4, PA+4, OA)],
              [f"ds_read_b128 {vr(VB[q],4)}, v{vV} offset:{o+1280}",
               f"ds_read_b128 {vr(VB[q]+4,4)}, v{vV} offset:{o+1952}"], "s_waitcnt lgkmcnt(0)")
    A(f"""
    s_add_u32 s24, s24, 1
    s_cmp_lt_u32 s24, 4
    s_cbranch_scc1 K2_LOOP
    """)
    mf(OB, VB[1], PB, OB); mf(OB, VB[1]+4, PB+4, OB)
    A(f"""
    s_mov_b32 s26, {f32(2.0**30)}
    s_mov_b32 s27, {f32(2.0**-30)}
    v_cmp_nlt_f32 s[32:33], v{OA+12}, s26
    v_cmp_ngt_f32 s[34:35], v{OA+12}, s27
    s_waitcnt lgkmcnt(0)
    v_cmp_nlt_f32 s[36:37], v{OB+12}, s26
    v_cmp_ngt_f32 s[38:39], v{OB+12}, s27
    s_or_b64 s[32:33], s[32:33], s[34:35]
    s_or_b64 s[36:37], s[36:37], s[38:39]
    s_or_b64 s[32:33], s[32:33], s[36:37]
    s_cbranch_scc1 K2_FB
    """)
    A.label("K2_STORE")
    A(f"s_add_u32 s22, s22, {WS_O}")
    for O, off in ((OA, 0), (OB, 1280)):
        A(f"v_rcp_f32 v8, v{O+12}")
        for r in range(12): A(f"v_mul_f32 v{O+r}, v{O+r}, v8")
        for r in range(6): A(f"v_cvt_pk_bf16_f32 v{O+r}, v{O+2*r}, v{O+2*r+1}")
        A(f"""
        buffer_store_dwordx2 {vr(O,2)}, v{vo}, s[4:7], s22 offen offset:{off}
        buffer_store_dwordx2 {vr(O+2,2)}, v{vo}, s[4:7], s22 offen offset:{off+16}
        buffer_store_dwordx2 {vr(O+4,2)}, v{vo2}, s[4:7], s22 offen offset:{off+32}
        """)
    A("s_endpgm")
    A.label("K2_FB")
    A(f"""
    v_mov_b32 v{QA1+2}, 0
    v_mov_b32 v{QB1+2}, 0
    v_mov_b32 v8, 0xff800000
    v_mov_b32 v10, 0xff800000
    s_mov_b32 s23, {WS_KV}
    """)
    A.label("K2_FB1")
    A(f"""
    buffer_load_dwordx4 {vr(KB[0],4)}, v{gK0}, s[4:7], s23 offen
    buffer_load_dwordx2 {vr(KB[0]+4,2)}, v{gK1}, s[4:7], s23 offen offset:1024
    s_add_u32 s23, s23, {TILE_B}
    s_waitcnt vmcnt(0)
    """)
    mf(SA, KB[0], QA0); mf(SA, KB[0]+4, QA1, SA)
    mf(SB, KB[0], QB0); mf(SB, KB[0]+4, QB1, SB)
    vmax16(8, SA, 1); vmax16(10, SB, 1)
    A(f"""
    s_cmp_lt_u32 s23, {WS_KV + 64*TILE_B}
    s_cbranch_scc1 K2_FB1
    """)
    swapmax(8, 9); swapmax(10, 11)
    for r in range(32): A(f"v_mov_b32 v{OA+r}, 0")
    A(f"s_mov_b32 s23, {WS_KV}")
    A.label("K2_FB2")
    A(f"""
    buffer_load_dwordx4 {vr(KB[0],4)}, v{gK0}, s[4:7], s23 offen
    buffer_load_dwordx2 {vr(KB[0]+4,2)}, v{gK1}, s[4:7], s23 offen offset:1024
    buffer_load_dwordx4 {vr(VB[0],4)}, v{gV}, s[4:7], s23 offen offset:1280
    buffer_load_dwordx4 {vr(VB[0]+4,4)}, v{gV}, s[4:7], s23 offen offset:1952
    s_add_u32 s23, s23, {TILE_B}
    s_waitcnt vmcnt(0)
    """)
    mf(SA, KB[0], QA0); mf(SA, KB[0]+4, QA1, SA)
    mf(SB, KB[0], QB0); mf(SB, KB[0]+4, QB1, SB)
    for S, P, m, O in ((SA, PA, 8, OA), (SB, PB, 10, OB)):
        for r in range(16): A(f"v_sub_f32 v{S+r}, v{S+r}, v{m}")
        for r in range(16): A(f"v_exp_f32 v{S+r}, v{S+r}")
        for r in range(8): A(f"v_cvt_pk_bf16_f32 v{P+r}, v{S+2*r}, v{S+2*r+1}")
        mf(O, VB[0], P, O); mf(O, VB[0]+4, P+4, O)
    A(f"""
    s_cmp_lt_u32 s23, {WS_KV + 64*TILE_B}
    s_cbranch_scc1 K2_FB2
    s_branch K2_STORE
    """)
    KEY = 4; XF = 16; WD = 40; BF = 56; ACC = 64; ST = 68; T = 72; Y = 84
    vL8, vGU, vWD, vX, vTR, vP = 8, 9, 10, 11, 12, 13
    l15, g = 14, 15
    A.label("K2_HELP")
    A(f"""
    s_sub_u32 s3, s3, 4
    v_lshlrev_b32 v{vL8}, 3, v{lane}
    s_mul_i32 s22, s3, 11264
    s_add_u32 s23, s22, {WS_KV}
    s_mov_b32 s33, {WS_KEY}
    s_mul_i32 s24, s20, 27
    s_add_u32 s24, s24, s21
    s_mul_i32 s25, s20, 5
    s_add_u32 s25, s25, s21
    s_add_u32 s25, s25, {216-27}
    s_cmp_lt_u32 s21, 27
    s_cselect_b32 s25, s24, s25
    s_cselect_b32 s14, {640*3456}, 0
    s_cselect_b32 s18, {1728*1280}, 0
    s_mov_b32 s15, 0x20000
    s_mov_b32 s19, 0x20000
    s_mov_b32 s10, 2621440
    s_mov_b32 s11, 0x20000
    s_bitcmp1_b32 s3, 1
    s_waitcnt lgkmcnt(0)
    s_cselect_b64 s[12:13], s[30:31], s[28:29]
    buffer_load_dwordx2 {vr(KEY,2)}, v{vL8}, s[4:7], s33 offen
    """)
    def dma_group(gi, slot):
        for qd in range(3):
            A(f"""
            s_add_u32 m0, s22, {slot*SLOT + qd*4096}
            s_add_u32 s26, s23, {gi*GRP + qd*4096}
            """)
            for r in range(4 if qd < 2 else 3):
                A(f"buffer_load_dwordx4 v{vK0}, s[4:7], s26 offen offset:{r*1024} lds")
    for gi in range(3): dma_group(gi, gi)
    A(f"""
    v_mul_u32_u24 v{vGU}, 3456, v{lane}
    s_lshl_b32 s26, s24, 4
    s_and_b32 s27, s3, 1
    s_mul_i32 s27, s27, {320*3456}
    s_add_u32 s26, s26, s27
    s_mul_i32 s27, s3, 5120
    s_add_u32 s27, s27, {L_G}
    """)
    for i in range(5):
        A(f"""
        s_add_u32 m0, s27, {i*1024}
        s_nop 0
        buffer_load_dwordx4 v{vGU}, s[12:15], s26 offen lds
        s_add_u32 s26, s26, {64*3456}
        """)
    A(f"""
    s_mul_i32 s26, s24, 10240
    s_mul_i32 s27, s3, 320
    s_add_u32 s26, s26, s27
    s_add_u32 s34, s26, 5120
    """)
    for f in range(8):
        A(f"buffer_load_dwordx2 {vr(WD+2*f,2)}, v{vL8}, s[16:19], s{26 if f < 4 else 34} offen offset:{(f%4)*1280}")
    A(f"""
    v_and_b32 v{l15}, 15, v{lane}
    v_lshrrev_b32 v{g}, 4, v{lane}
    v_lshlrev_b32 v{vX}, 4, v{g}
    v_mov_b32 v6, 0
    s_waitcnt vmcnt(46)
    v_max_u32 v{KEY}, v{KEY}, v{KEY+1}
    """)
    for sh in (8, 4, 2, 1):
        A(f"v_max_u32_dpp v{KEY}, v{KEY}, v{KEY} row_ror:{sh} row_mask:0xf bank_mask:0xf")
    A(f"""
    v_mov_b32 v{KEY+1}, v{KEY}
    v_permlane16_swap_b32 v{KEY}, v{KEY+1}
    v_max_u32 v{KEY}, v{KEY}, v{KEY+1}
    v_mov_b32 v{KEY+1}, v{KEY}
    v_permlane32_swap_b32 v{KEY}, v{KEY+1}
    v_max_u32 v{KEY}, v{KEY}, v{KEY+1}
    v_readfirstlane_b32 s35, v{KEY}
    s_andn2_b32 s35, 0x7ff, s35
    s_mul_i32 s36, s35, 1280
    s_add_u32 s36, s36, s27
    s_lshl_b32 s37, s35, 3
    s_add_u32 s37, s37, {WS_ST}
    """)
    for i in range(5):
        A(f"buffer_load_dwordx4 {vr(XF+4*i,4)}, v{vX}, s[8:11], s36 offen offset:{i*64}")
    A(f"""
    buffer_load_dwordx2 {vr(ST,2)}, v6, s[4:7], s37 offen
    s_waitcnt vmcnt(41)
    s_barrier
    s_or_b32 s38, s2, s3
    s_cmp_eq_u32 s38, 0
    s_cselect_b32 s38, 0, 0x40000000
    s_add_u32 s38, s38, {WS_MISC}
    buffer_store_dword v{KEY}, v6, s[4:7], s38 offen
    v_bfe_u32 v{vTR}, v{lane}, 2, 2
    v_lshl_add_u32 v{vTR}, v{g}, 3, v{vTR}
    v_lshlrev_b32 v{vTR}, 4, v{vTR}
    v_and_b32 v7, 1, v{lane}
    v_lshl_add_u32 v{vTR}, v7, 3, v{vTR}
    v_bfe_u32 v7, v{lane}, 1, 1
    v_mul_u32_u24 v7, 10240, v7
    s_mul_i32 s38, s3, 2560
    s_add_u32 s38, s38, {L_G}
    v_add3_u32 v{vTR}, v{vTR}, v7, s38
    s_lshl_b32 s38, s3, 9
    s_add_u32 s38, s38, {L_P}
    v_add_u32 v{vP}, s38, v{vL8}
    v_cmp_eq_u32 vcc, 1, v{l15}
    v_mov_b32 v7, 0x3f803f80
    s_waitcnt vmcnt(0)
    """)
    for r in range(20): A(f"v_cndmask_b32 v{XF+r}, v{XF+r}, v7, vcc")
    A("s_barrier")
    dma_group(3, 0)
    for i in range(5):
        b = BF + 4 * (i & 1)
        A(f"""
        ds_read_b64_tr_b16 {vr(b,2)}, v{vTR} offset:{i*512}
        ds_read_b64_tr_b16 {vr(b+2,2)}, v{vTR} offset:{i*512+64}
        s_waitcnt lgkmcnt(0)
        v_mfma_f32_16x16x32_bf16 {vr(ACC,4)}, {vr(XF+4*i,4)}, {vr(b,4)}, {'0' if i == 0 else vr(ACC,4)}
        """)
    A(f"""
    v_lshlrev_b32 v7, 3, v{l15}
    v_add_u32 v7, {L_P}, v7
    ds_write_b64 v{vP}, {vr(ACC,2)}
    s_waitcnt vmcnt(0) lgkmcnt(0)
    s_barrier
    """)
    for i in range(4): A(f"ds_read_b64 {vr(T+2*i,2)}, v7 offset:{i*512}")
    A(f"""
    s_mov_b32 s40, 0x05040100
    s_mov_b32 s41, 0x07060302
    s_mul_i32 s25, s25, 2560
    s_mul_i32 s26, s3, 640
    s_add_u32 s25, s25, s26
    s_add_u32 s25, s25, {WS_YP}
    s_waitcnt lgkmcnt(0)
    v_add_f32 v{T}, v{T}, v{T+2}
    v_add_f32 v{T+1}, v{T+1}, v{T+3}
    v_add_f32 v{T+4}, v{T+4}, v{T+6}
    v_add_f32 v{T+5}, v{T+5}, v{T+7}
    v_add_f32 v{T}, v{T}, v{T+4}
    v_add_f32 v{T+1}, v{T+1}, v{T+5}
    v_fma_f32 v{T}, -v{ST}, v{T+1}, v{T}
    v_mul_f32 v{T}, v{T}, v{ST+1}
    """)
    rbf(A, T, T)
    A(f"""
    v_mul_f32 v{T+1}, {f32(-LOG2E)}, v{T}
    v_exp_f32 v{T+1}, v{T+1}
    v_mov_b32_dpp v{T+2}, v{T} row_ror:8 row_mask:0xf bank_mask:0xf
    v_add_f32 v{T+1}, 1.0, v{T+1}
    v_rcp_f32 v{T+1}, v{T+1}
    v_mul_f32 v{T+1}, v{T+1}, v{T}
    """)
    rbf(A, T+1, T+1)
    A(f"""
    v_mul_f32 v{T+1}, v{T+1}, v{T+2}
    v_cvt_pk_bf16_f32 v{T+1}, v{T+1}, v{T+1}
    """)
    for f in range(8): A(f"v_readlane_b32 s{44+f}, v{T+1}, {f}")
    for fp in range(4): A(f"s_pack_hh_b32_b16 s{44+fp}, s{44+2*fp}, s{45+2*fp}")
    for fp in range(4):
        r0, r1 = WD + 4*fp, WD + 4*fp + 2
        for c in range(4):
            A(f"v_perm_b32 v{T+4+c}, v{r1+(c>>1)}, v{r0+(c>>1)}, s{40+(c&1)}")
        for c in range(4):
            A(f"v_dot2_f32_bf16 v{Y+c}, v{T+4+c}, s{44+fp}, {'0' if fp == 0 else f'v{Y+c}'}")
    A(f"""
    s_mov_b32 exec_hi, 0xff
    buffer_store_dwordx4 {vr(Y,4)}, v{vK0}, s[4:7], s25 offen
    """)
    A.label("K2_END")
    A("s_endpgm")
    return A, LDS2, NV
```

```python
from asmlib import Asm
from common import *
from k1 import rbf, dma_voffs
import math
LOG2E = math.log2(math.e)

def ar(a, n): return f"a[{a}:{a+n-1}]"
def p2(a): return f"v[{a}:{a+1}]"

def gen_k3():
    A = Asm()
    L_Y = 102400; L_G2 = L_Y + 3840; LDS = L_G2 + 512
    lane, g, l15 = 2, 3, 4
    VW = 8; VT = 13; VX = 14; vxo = 15; vst = 16; vy = 17
    T = 20; ACC = 40; XP = 60; XF = 70; G = 90; ST = 110; t0 = 112
    CST = 126
    YL = 128; SP = 200
    NV = 224; NA = 80
    E = 20
    def unpack(d, s):
        A(f"v_and_b32 v{d+1}, 0xffff0000, v{s}")
        A(f"v_lshlrev_b32 v{d}, 16, v{s}")
    def gpair(xf, st, gd, a, b, y=None):
        A(f"v_pk_add_f32 {p2(a)}, {p2(xf)}, {p2(st)} op_sel_hi:[1,0] neg_lo:[0,1] neg_hi:[0,1]")
        A(f"v_cvt_pk_bf16_f32 v{a}, v{a}, v{a+1}")
        unpack(a, a)
        A(f"v_pk_mul_f32 {p2(a)}, {p2(a)}, {p2(st)} op_sel:[0,1] op_sel_hi:[1,1]")
        A(f"v_cvt_pk_bf16_f32 v{a}, v{a}, v{a+1}")
        unpack(a, a)
        if y is not None:
            A(f"v_pk_add_f32 {p2(a)}, {p2(a)}, {p2(y)}")
            A(f"v_cvt_pk_bf16_f32 v{a}, v{a}, v{a+1}")
            unpack(a, a)
        A(f"v_pk_mul_f32 {p2(b)}, {p2(a)}, {p2(CST)} op_sel_hi:[1,0]")
        A(f"v_exp_f32 v{b}, v{b}")
        A(f"v_exp_f32 v{b+1}, v{b+1}")
        A(f"v_pk_add_f32 {p2(b)}, {p2(b)}, {p2(CST)} op_sel:[0,1] op_sel_hi:[1,1]")
        A(f"v_rcp_f32 v{b}, v{b}")
        A(f"v_rcp_f32 v{b+1}, v{b+1}")
        A(f"v_pk_mul_f32 {p2(gd)}, {p2(a)}, {p2(b)}")
        A(f"v_cvt_pk_bf16_f32 v{gd}, v{gd}, v{gd+1}")
        unpack(gd, gd)
    A.label("outp_kernel")
    A(f"""
    s_cmp_ge_u32 s2, 256
    s_cbranch_scc1 K3_END
    s_load_dwordx2 s[4:5], s[0:1], 0
    s_load_dwordx2 s[8:9], s[0:1], 32
    s_load_dwordx2 s[12:13], s[0:1], 80
    s_load_dwordx2 s[20:21], s[0:1], 96
    v_lshrrev_b32 v1, 6, v0
    v_and_b32 v{lane}, 63, v0
    v_readfirstlane_b32 s26, v1
    s_and_b32 s3, s2, 7
    s_lshr_b32 s27, s2, 3
    s_and_b32 s25, s27, 7
    s_lshr_b32 s27, s27, 3
    s_lshl_b32 s24, s3, 2
    s_add_u32 s24, s24, s27
    v_lshrrev_b32 v{g}, 4, v{lane}
    v_and_b32 v{l15}, 15, v{lane}
    s_mul_i32 s42, s25, 160
    v_mul_u32_u24 v{VX}, 1280, v{l15}
    v_lshl_add_u32 v{vxo}, v{g}, 3, v{VX}
    v_lshl_add_u32 v{VX}, v{g}, 4, v{VX}
    v_lshlrev_b32 v{vst}, 3, v{l15}
    s_mov_b32 s6, 2621440
    s_mov_b32 s7, 0x20000
    s_mov_b32 s10, 819200
    s_mov_b32 s11, 0x20000
    s_mov_b32 s14, 2621440
    s_mov_b32 s15, 0x20000
    s_mov_b32 s22, {WS_SIZE}
    s_mov_b32 s23, 0x20000
    s_mul_i32 s50, s24, 81920
    s_mul_i32 s51, s26, 20480
    s_add_u32 s50, s50, s51
    s_add_u32 s53, s50, s42
    s_add_u32 s50, s50, {WS_O}
    s_mul_i32 s51, s26, 40960
    s_mul_i32 s52, s26, 5120
    s_lshl_b32 s43, s24, 9
    s_lshl_b32 s56, s26, 7
    s_add_u32 s43, s43, s56
    s_add_u32 s43, s43, {WS_ST}
    """)
    dma_voffs(A, VW, lane, t0, 42)
    A(f"""
    s_mov_b32 s29, {WS_MISC}
    s_waitcnt lgkmcnt(0)
    s_load_dword s28, s[20:21], s29
    buffer_load_dwordx2 {vr(ST,2)}, v{vst}, s[20:23], s43 offen
    """)
    for i in range(5):
        A(f"buffer_load_dwordx2 {vr(XP+2*i,2)}, v{vxo}, s[4:7], s53 offen offset:{i*32}")
    def stage_loads(s):
        for k in range(4):
            ks = 4*s + k
            A(f"buffer_load_dwordx4 {ar(4*ks,4)}, v{VX}, s[20:23], s50 offen offset:{ks*64}")
        for i in range(5):
            A(f"""
            s_add_u32 m0, s52, {s*20480 + i*1024}
            s_nop 0
            buffer_load_dwordx4 v{VW+i}, s[8:11], s51 offen lds
            """)
        A(f"s_add_u32 s51, s51, {4*40960}")
    for s in range(3): stage_loads(s)
    A(f"""
    v_lshrrev_b32 v{t0}, 2, v{lane}
    v_and_b32 v{t0+1}, 3, v{lane}
    v_mul_u32_u24 v{VT}, 160, v{t0}
    v_lshl_add_u32 v{VT}, v{t0+1}, 3, v{VT}
    v_mov_b32 v{CST}, {f32(-LOG2E)}
    v_mov_b32 v{CST+1}, 1.0
    s_waitcnt lgkmcnt(0)
    s_andn2_b32 s29, 0x7ff, s28
    s_lshr_b32 s30, s29, 6
    s_cmp_eq_u32 s30, s24
    s_cselect_b32 s31, 1, 0
    s_cbranch_scc0 K3_NS1
    v_mul_u32_u24 v{t0}, 3277, v{lane}
    v_lshrrev_b32 v{t0}, 16, v{t0}
    v_mul_u32_u24 v{t0+1}, 20, v{t0}
    v_sub_u32 v{t0+1}, v{lane}, v{t0+1}
    v_min_u32 v{t0}, 2, v{t0}
    s_mul_i32 s32, s26, 3
    v_add_u32 v{t0}, s32, v{t0}
    v_mul_u32_u24 v{vy}, 320, v{t0}
    v_lshl_add_u32 v{vy}, v{t0+1}, 4, v{vy}
    v_add_u32 v{vy}, {L_Y}, v{vy}
    v_mul_u32_u24 v{t0}, 2560, v{t0}
    v_lshl_add_u32 v{t0}, v{t0+1}, 4, v{t0}
    s_lshl_b32 s32, s42, 1
    s_add_u32 s32, s32, {WS_YP}
    """)
    for i in range(18):
        A(f"""
        buffer_load_dwordx4 {vr(YL+4*i,4)}, v{t0}, s[20:23], s32 offen
        s_add_u32 s32, s32, {12*2560}
        """)
    A(f"""
    v_lshlrev_b32 v{t0}, 2, v{lane}
    v_mov_b32 v{t0+1}, 0
    s_mul_i32 s32, s29, 1280
    s_add_u32 s32, s32, s42
    s_lshl_b32 s33, s29, 3
    s_add_u32 s33, s33, {WS_ST}
    buffer_load_dword v{SP}, v{t0}, s[4:7], s32 offen
    buffer_load_dwordx2 {vr(SP+2,2)}, v{t0+1}, s[20:23], s33 offen
    """)
    A.label("K3_NS1")
    stage_loads(3)
    def vwait(n, tag):
        A(f"""
        s_cmp_lg_u32 s31, 0
        s_cbranch_scc1 K3_W{tag}
        s_waitcnt vmcnt({n})
        """)
        A.label(f"K3_W{tag}")
        A(f"s_waitcnt vmcnt({n+E})")
    vwait(36, "x")
    for i in range(10):
        unpack(XF+2*i, XP+i)
        gpair(XF+2*i, ST, G+2*i, t0 + 4*(i&1), t0 + 2 + 4*(i&1))
    def rd_tile(i, n):
        o = (n % 10) * 5120 + i * 32
        A(f"ds_read_b64_tr_b16 {vr(T+4*i,2)}, v{VT} offset:{o}")
        A(f"ds_read_b64_tr_b16 {vr(T+4*i+2,2)}, v{VT} offset:{o+2560}")
    vwait(27, "0")
    A("s_barrier")
    stage_loads(4)
    for i in range(5): rd_tile(i, 0)
    for n in range(20):
        last = n == 19
        if n % 4 == 3 and not last:
            s = (n + 1) // 4
            if s == 1: vwait(27, "1")
            elif s == 2: vwait(18, "2")
            elif s == 3:
                A(f"""
                s_waitcnt vmcnt(9)
                s_cmp_lg_u32 s31, 0
                s_cbranch_scc0 K3_NS2
                """)
                for i in range(1, 18):
                    A(f"v_pk_add_f32 {p2(YL)}, {p2(YL)}, {p2(YL+4*i)}")
                    A(f"v_pk_add_f32 {p2(YL+2)}, {p2(YL+2)}, {p2(YL+4*i+2)}")
                A(f"""
                ds_write_b128 v{vy}, {vr(YL,4)}
                s_waitcnt lgkmcnt(0)
                """)
                A.label("K3_NS2")
            else: A("s_waitcnt vmcnt(0)")
            A("s_barrier")
            if s == 3:
                A(f"""
                s_bfe_u32 s32, s29, 0x20004
                s_cmp_eq_u32 s32, s26
                s_cselect_b32 s32, s31, 0
                s_cmp_lg_u32 s32, 0
                s_cbranch_scc0 K3_NS3
                v_lshlrev_b32 v{vy}, 3, v{lane}
                v_add_u32 v{vy}, {L_Y}, v{vy}
                """)
                for i in range(5): A(f"ds_read_b64 {p2(YL+2*i)}, v{vy} offset:{i*320}")
                A(f"""
                s_lshr_b32 s33, s28, 16
                s_bitcmp1_b32 s28, 31
                s_cselect_b32 s34, 0x8000, -1
                s_xor_b32 s33, s33, s34
                s_lshl_b32 s33, s33, 16
                v_mul_f32 v{SP+4}, s33, v{CST}
                v_exp_f32 v{SP+4}, v{SP+4}
                s_waitcnt lgkmcnt(0)
                """)
                for i in range(5, 12): A(f"ds_read_b64 {p2(YL+2*i)}, v{vy} offset:{i*320}")
                A(f"""
                v_add_f32 v{SP+4}, 1.0, v{SP+4}
                v_rcp_f32 v{SP+4}, v{SP+4}
                """)
                for i in range(1, 5): A(f"v_pk_add_f32 {p2(YL)}, {p2(YL)}, {p2(YL+2*i)}")
                rbf(A, SP+4, SP+4)
                unpack(SP+6, SP)
                A("s_waitcnt lgkmcnt(0)")
                for i in range(5, 12): A(f"v_pk_add_f32 {p2(YL)}, {p2(YL)}, {p2(YL+2*i)}")
                A(f"v_cvt_pk_bf16_f32 v{YL}, v{YL}, v{YL+1}")
                unpack(YL, YL)
                A(f"v_pk_mul_f32 {p2(YL)}, {p2(YL)}, {p2(SP+4)} op_sel_hi:[1,0]")
                A(f"v_cvt_pk_bf16_f32 v{YL}, v{YL}, v{YL+1}")
                unpack(YL, YL)
                gpair(SP+6, SP+2, SP+8, SP+10, SP+12, y=YL)
                A(f"""
                ds_write_b64 v{vy}, {p2(SP+8)} offset:{L_G2-L_Y}
                v_lshlrev_b32 v{vy}, 4, v{g}
                v_add_u32 v{vy}, {L_G2}, v{vy}
                s_and_b32 s33, s29, 15
                v_cmp_eq_u32 vcc, s33, v{l15}
                s_waitcnt lgkmcnt(0)
                """)
                for i in range(5): A(f"ds_read_b128 {vr(YL+4*i,4)}, v{vy} offset:{i*64}")
                A("s_waitcnt lgkmcnt(0)")
                for r in range(20): A(f"v_cndmask_b32 v{G+r}, v{G+r}, v{YL+r}, vcc")
                A.label("K3_NS3")
        if n == 9: A(f"v_add_u32 v{VT}, 51200, v{VT}")
        cnt = 8
        for i in range(5):
            A(f"s_waitcnt lgkmcnt({cnt})")
            A(f"v_mfma_f32_16x16x32_bf16 {vr(ACC+4*i,4)}, {vr(T+4*i,4)}, {ar(4*n,4)}, {'0' if n == 0 else vr(ACC+4*i,4)}")
            if not last: rd_tile(i, n+1)
            else: cnt -= 2
    for i in range(5):
        for h in range(2):
            a = ACC + 4*i + 2*h; j = 2*i + h
            A(f"v_cvt_pk_bf16_f32 v{a}, v{a}, v{a+1}")
            unpack(a, a)
            A(f"v_pk_mul_f32 {p2(a)}, {p2(a)}, {p2(G+2*j)}")
            A(f"v_cvt_pk_bf16_f32 v{a}, v{a}, v{a+1}")
            unpack(a, a)
            A(f"v_pk_add_f32 {p2(a)}, {p2(a)}, {p2(XF+2*j)}")
            A(f"v_cvt_pk_bf16_f32 v{XP+j}, v{a}, v{a+1}")
        A(f"buffer_store_dwordx2 {vr(XP+2*i,2)}, v{vxo}, s[12:15], s53 offen offset:{i*32}")
    A.label("K3_END")
    A("s_endpgm")
    return A, LDS, (NV, NA)
```

```python
import sys, os
sys.path.insert(0, os.path.dirname(os.path.abspath(__file__)))
from asmlib import *
from common import *
NAME = "recurrent_scan__grouped_kv_mqa__moe_arch_mod__prompt"
def build(kernels, out):
    ref = open(f"cdna_kernels/{NAME}.s.ref").read().split('\n')
    head = []
    for l in ref:
        if l.startswith(';') and '@launch' not in l and 'Override launch' not in l and 'grid=ceil' not in l: head.append(l)
        elif not l.startswith(';'): break
    txt = head[:]
    for lab, A, lds, nv, grid, block in kernels:
        txt.append(f"; @launch kernel={lab} grid=({grid},1,1) block=({block},1,1) lds={lds}")
    txt += ['.amdgcn_target "amdgcn-amd-amdhsa--gfx950"', '.text']
    for lab, A, lds, nv, grid, block in kernels:
        lines, ins = pad_hazards(A.L)
        errs = lint_waitcnt(lines)
        print(f"{lab}: {len(lines)} lines, {len(ins)} nops inserted, {len(errs)} waitcnt lint errs")
        if os.environ.get("V"):
            for t, w in ins: print("   nop", w, "before", t)
        for e in errs[:20]: print("   LINT", e)
        txt += [f".globl {lab}", ".p2align 8", f".type {lab},@function"]
        for l in lines:
            txt.append(l if l.endswith(':') or l.startswith('.') else "  " + l)
    txt += ["CODE_END:", "  s_endpgm"]
    txt += ['.section .rodata,"a"']
    for lab, A, lds, nv, grid, block in kernels:
        na = 0
        if isinstance(nv, tuple): nv, na = nv
        acc = (nv + 3) // 4 * 4
        txt += [".p2align 6", f".amdhsa_kernel {lab}", f"  .amdhsa_next_free_vgpr {acc+na}", "  .amdhsa_next_free_sgpr 102",
                f"  .amdhsa_accum_offset {acc}", "  .amdhsa_group_segment_fixed_size 0", "  .amdhsa_kernarg_size 104",
                "  .amdhsa_user_sgpr_count 2", "  .amdhsa_user_sgpr_kernarg_segment_ptr 1",
                "  .amdhsa_system_sgpr_workgroup_id_x 1", ".end_amdhsa_kernel"]
    open(out, "w").write('\n'.join(txt) + '\n')

if __name__ == "__main__":
    from k1 import gen_k1
    ks = []
    A, lds, nv = gen_k1(); ks.append(("proj_kernel", A, lds, nv, 256, 256))
    which = os.environ.get("KS", "123")
    if '2' in which:
        from k2 import gen_k2
        A, lds, nv = gen_k2(); ks.append(("attn_kernel", A, lds, nv, 256, 512))
    if '3' in which:
        from k3 import gen_k3
        A, lds, nv = gen_k3(); ks.append(("outp_kernel", A, lds, nv, 256, 256))
    out = sys.argv[1] if len(sys.argv) > 1 else f"cdna_kernels/{NAME}.s"
    build(ks, out)
```

```python
import re

TRANS = ("v_exp_f32", "v_log_f32", "v_rcp_f32", "v_rsq_f32", "v_sqrt_f32", "v_sin_f32", "v_cos_f32",
         "v_exp_f16", "v_rcp_f16", "v_rcp_iflag_f32")

def regs_of(tok):
    tok = tok.strip()
    neg = tok.startswith('-')
    if neg: tok = tok[1:]
    if tok.startswith('|') and tok.endswith('|'): tok = tok[1:-1]
    m = re.fullmatch(r'([vsa])(\d+)', tok)
    if m: return {(m.group(1), int(m.group(2)))}
    m = re.fullmatch(r'([vsa])\[(\d+):(\d+)\]', tok)
    if m: return {(m.group(1), i) for i in range(int(m.group(2)), int(m.group(3)) + 1)}
    if tok in ('vcc', 'vcc_lo', 'vcc_hi'): return {('vcc', 0)}
    if tok in ('exec', 'exec_lo', 'exec_hi'): return {('exec', 0)}
    if tok == 'm0': return {('m0', 0)}
    return set()

class Ins:
    __slots__ = ('text', 'op', 'ops', 'mods', 'kind', 'wr', 'rd', 'label', 'target', 'passes', 'A', 'B', 'C', 'D',
                 'isdpp', 'store_data', 'addr', 'lds_dma', 'nopn', 'sel')
    def __init__(self, text):
        self.text = text
        self.label = None; self.target = None
        self.wr = set(); self.rd = set(); self.kind = 'other'; self.passes = 0
        self.isdpp = False; self.store_data = set(); self.lds_dma = False; self.nopn = 0; self.sel = set()
        t = text.split(';')[0].strip()
        if t.endswith(':'):
            self.label = t[:-1]; self.kind = 'label'; self.op = ''; return
        if t.startswith('.') or not t:
            self.kind = 'directive'; self.op = ''; return
        parts = t.split(None, 1)
        self.op = op = parts[0]
        rest = parts[1] if len(parts) > 1 else ''
        toks = [x.strip() for x in rest.split(',')] if rest else []
        mods = ''
        if toks:
            last = toks[-1].split(None, 1)
            if len(last) > 1:
                toks[-1] = last[0]; mods = last[1]
        self.ops = toks; self.mods = mods
        R = [regs_of(x) for x in toks]
        if op.startswith('v_mfma'):
            self.kind = 'mfma'
            self.passes = 8 if '32x32x16' in op else 4 if '16x16x32' in op else None
            assert self.passes, op
            self.D, self.A, self.B, self.C = R[0], R[1], R[2], R[3]
            self.wr = set(R[0]); self.rd = R[1] | R[2] | R[3]
        elif op.startswith('v_'):
            self.kind = 'valu'
            self.isdpp = ('dpp' in op) or any(k in mods for k in ('row_', 'quad_perm', 'wave_'))
            if op.startswith('v_permlane') and 'swap' in op:
                self.wr = R[0] | R[1]; self.rd = R[0] | R[1]
            elif op.startswith('v_cmpx'):
                self.wr = {('exec', 0)} | (R[0] if len(R) == 3 else set()); self.rd = set().union(*R[-2:])
            elif op.startswith(('v_add_co', 'v_sub_co', 'v_subrev_co', 'v_addc_co', 'v_subb_co')):
                self.wr = R[0] | R[1]; self.rd = set().union(*R[2:])
            elif op.startswith('v_writelane'):
                self.wr = R[0]; self.rd = R[0] | R[1] | R[2]; self.sel = R[2]
            elif op.startswith('v_readlane'):
                self.wr = R[0]; self.rd = R[1] | R[2]; self.sel = R[2]
            elif op == 'v_nop':
                pass
            else:
                self.wr = set(R[0]); self.rd = set().union(*R[1:]) if len(R) > 1 else set()
                if op.startswith('v_cndmask') and len(R) == 3: self.rd |= {('vcc', 0)}
                if op.startswith(('v_fmac', 'v_mac', 'v_dot2c', 'v_pk_fmac')): self.rd |= R[0]
                if self.isdpp or 'sdwa' in op: self.rd |= R[0]
        elif op.startswith(('buffer_', 'global_')):
            self.kind = 'vmem'
            islds = ('lds' in mods.split()) or ('_lds_' in op)
            self.lds_dma = islds
            if islds:
                self.rd = set().union(*R) | {('m0', 0)}
            elif 'load' in op:
                self.wr = set(R[0]); self.rd = set().union(*R[1:])
                if 'd16' in op: self.rd |= R[0]
            elif 'store' in op:
                self.rd = set().union(*R)
                data = R[0] if op.startswith('buffer_') else R[1]
                if len(data) >= 3: self.store_data = data
            elif op in ('buffer_inv', 'buffer_wbl2'):
                pass
            elif 'atomic' in op:
                self.rd = set().union(*R)
                if 'sc0' in mods.split(): self.wr = set(R[0])
            else:
                raise ValueError(text)
        elif op.startswith('ds_'):
            self.kind = 'ds'
            if 'read' in op or 'permute' in op or 'swizzle' in op:
                self.wr = set(R[0]); self.rd = set().union(*R[1:])
            else:
                self.rd = set().union(*R)
        elif op.startswith(('s_load', 's_buffer_load', 's_memtime', 's_memrealtime')):
            self.kind = 'smem'
            self.wr = set(R[0]); self.rd = set().union(*R[1:]) if len(R) > 1 else set()
        elif op.startswith('s_'):
            self.kind = 'salu'
            if op == 's_nop':
                self.nopn = int(toks[0], 0)
            elif op.startswith(('s_cbranch', 's_branch')):
                self.target = toks[0]; self.kind = 'branch'
            elif op.startswith(('s_cmp', 's_bitcmp', 's_waitcnt', 's_barrier', 's_endpgm', 's_setprio', 's_sleep')):
                self.rd = set().union(*R) if R else set()
            else:
                self.wr = set(R[0]) if R else set(); self.rd = set().union(*R[1:]) if len(R) > 1 else set()
                if 'saveexec' in op: self.wr |= {('exec', 0)}
        else:
            raise ValueError("unknown instr: " + text)

    def ws(self):
        if self.kind in ('label', 'directive'): return 0
        if self.op == 's_nop': return self.nopn + 1
        return 1

def vg(s): return {r for r in s if r[0] in ('v', 'a')}
def sg(s): return {r for r in s if r[0] in ('s', 'vcc')}

def need(p, c):
    n = 0
    if p.kind == 'valu':
        pw_v = vg(p.wr); pw_s = sg(p.wr)
        isdot = p.op.startswith('v_dot')
        if c.kind == 'mfma' and pw_v & c.rd: n = max(n, 3 if isdot else 2)
        if c.kind == 'valu':
            if c.isdpp and pw_v & c.rd: n = max(n, 2)
            if c.op.startswith('v_permlane') and pw_v & c.rd: n = max(n, 2)
            if c.op.startswith(('v_readlane', 'v_readfirstlane')) and pw_v & c.rd: n = max(n, 1)
            if p.op.startswith(TRANS) and not c.op.startswith(TRANS) and pw_v & c.rd: n = max(n, 1)
            if p.op.startswith(TRANS) and c.op.startswith(TRANS) and pw_v & c.rd: n = max(n, 1)
            if pw_s & c.rd: n = max(n, 2)
            if pw_s & c.sel: n = max(n, 4)
            if ('exec', 0) in p.wr:
                if c.isdpp: n = max(n, 5)
                if c.op.startswith(('v_readlane', 'v_readfirstlane', 'v_writelane', 'v_permlane')): n = max(n, 4)
            if isdot:
                if c.op == p.op:
                    ab = set().union(*[regs_of(x) for x in c.ops[1:3]])
                    if pw_v & ab: n = max(n, 3)
                elif pw_v & (c.rd | c.wr): n = max(n, 3)
            if ('op_sel' in p.mods or 'sdwa' in p.op) and pw_v & (c.rd | c.wr): n = max(n, 1)
        if c.kind in ('vmem', 'ds') and isdot and pw_v & c.rd: n = max(n, 3)
        if c.kind == 'vmem' and pw_s & c.rd: n = max(n, 5)
        if c.kind == 'mfma' and ('exec', 0) in p.wr: n = max(n, 4)
        if c.kind in ('salu', 'branch', 'smem') and pw_s & c.rd: n = max(n, 1)
    elif p.kind == 'mfma':
        big = {4: 8, 8: 12}[p.passes]
        if c.kind == 'mfma':
            if p.D & (c.A | c.B): n = max(n, big)
            if p.D & c.C:
                if not (p.D == c.C and p.passes == c.passes): n = max(n, big - 2)
            elif p.D & c.D and not (p.D == c.D and p.passes == c.passes): n = max(n, big)
        elif c.kind in ('valu', 'vmem', 'ds'):
            if p.D & (c.rd | c.wr): n = max(n, big)
            if c.kind == 'valu' and p.C & c.wr: n = max(n, {4: 3, 8: 7}[p.passes])
            if c.kind in ('vmem', 'ds') and p.C & c.wr: n = max(n, {4: 3, 8: 7}[p.passes])
    elif p.kind == 'vmem':
        if p.store_data and p.store_data & c.wr: n = max(n, 2 if c.kind in ('valu', 'mfma') else 1)
    elif p.kind == 'salu':
        if ('m0', 0) in p.wr and c.kind == 'vmem' and c.lds_dma: n = max(n, 1)
    return n

class Asm:
    def __init__(self):
        self.L = []
    def __call__(self, s):
        for l in s.split('\n'):
            l = l.strip()
            if l: self.L.append(l)
    def label(self, n): self.L.append(n + ':')
    def comment(self, s): self.L.append('; ' + s)

def pad_hazards(lines, verbose=False):
    ins = [Ins(l) for l in lines]
    inserted = []
    changed = True
    it = 0
    while changed:
        changed = False; it += 1
        assert it < 3000
        labels = {x.label: i for i, x in enumerate(ins) if x.label}
        preds = {}
        for i, x in enumerate(ins):
            if x.kind == 'branch' and x.target in labels:
                preds.setdefault(labels[x.target], []).append(i)
        def fallthrough_ok(j):
            return ins[j].op not in ('s_branch', 's_endpgm')
        i = 0
        while i < len(ins):
            c = ins[i]
            if c.kind in ('label', 'directive'): i += 1; continue
            worst = 0
            stack = [(i, 0)]
            seen = {}
            while stack:
                j, d = stack.pop()
                ps = []
                if j > 0 and fallthrough_ok(j - 1): ps.append(j - 1)
                if j in preds: ps += preds[j]
                for pj in ps:
                    p = ins[pj]
                    if seen.get(pj, 99) <= d: continue
                    seen[pj] = d
                    if p.kind not in ('label', 'directive'):
                        nd = need(p, c)
                        if nd > d: worst = max(worst, nd - d)
                    d2 = d + p.ws()
                    if d2 < 12: stack.append((pj, d2))
            if worst > 0:
                nop = Ins(f's_nop {worst - 1}')
                ins.insert(i, nop)
                inserted.append((c.text, worst))
                changed = True
                break
            i += 1
    return [x.text for x in ins], inserted

def lint_waitcnt(lines):
    errs = []
    vm = []
    lg = []
    for n, l in enumerate(lines):
        x = Ins(l)
        if x.kind in ('label', 'directive'):
            continue
        if x.op == 's_endpgm' or x.op == 's_branch':
            vm = []; lg = []; continue
        if x.op == 's_waitcnt':
            m = re.search(r'vmcnt\((\d+)\)', l)
            if m:
                k = int(m.group(1)); vm = vm[len(vm) - k:] if k < len(vm) else vm
                if k == 0: vm = []
            m = re.search(r'lgkmcnt\((\d+)\)', l)
            if m:
                k = int(m.group(1))
                if k == 0: lg = []
                else:
                    if any(s for _, _, s in lg): errs.append((n, l, 'lgkmcnt(N>0) with SMEM outstanding'))
                    lg = lg[len(lg) - k:] if k < len(lg) else lg
            continue
        touched = x.rd | x.wr
        for regs, t in vm:
            if regs & touched: errs.append((n, l, 'pending vmem: ' + t))
        for regs, t, s in lg:
            if regs & touched: errs.append((n, l, 'pending lgkm: ' + t))
        if x.kind == 'vmem':
            vm.append((set(x.wr), l))
            if len(vm) > 63: errs.append((n, l, 'vmcnt overflow'))
        elif x.kind == 'ds':
            lg.append((set(x.wr), l, False))
            if len(lg) > 15: errs.append((n, l, 'lgkmcnt overflow'))
        elif x.kind == 'smem':
            lg.append((set(x.wr), l, True))
    return errs
```

```python
WS_Q = 0
WS_O = 0x280000
WS_KV = 0x500000
WS_KEY = 0x540000
WS_ST = 0x541000
WS_MISC = 0x545000
WS_YP = 0x546000
WS_SIZE = 0x640000
TILE_B = 2624
def vr(a, n): return f"v[{a}:{a+n-1}]"
def sr(a, n): return f"s[{a}:{a+n-1}]"
import struct
def f32(x): return "0x%08x" % struct.unpack("<I", struct.pack("<f", x))[0]

import os
TS = int(os.environ.get("TS", "0"))
WS_TS = 0x600000
def ts_mark(A, n):
    if TS:
        A(f"s_memrealtime s[{80+2*n}:{81+2*n}]")
        if n: A("s_waitcnt lgkmcnt(0)")
def clk_mark(A, n):
    if TS:
        A(f"s_memtime s[{80+2*n}:{81+2*n}]")
        A("s_waitcnt lgkmcnt(0)")
def ts_end(A, srd, kidx, nmarks=4, extra=0):
    if not TS: return
    A(f"""
    s_memrealtime s[{80+2*(nmarks-1)}:{81+2*(nmarks-1)}]
    s_mov_b64 exec, -1
    v_lshrrev_b32 v1, 6, v0
    s_lshl_b32 s98, s2, 3
    s_add_u32 s98, s98, {kidx*2048}
    v_add_u32 v1, s98, v1
    v_lshlrev_b32 v1, 5, v1
    s_mov_b32 s98, {WS_TS}
    s_waitcnt lgkmcnt(0)
    """)
    for i in range(nmarks + extra):
        A(f"v_mov_b32 v0, s{80+2*i}")
        A(f"buffer_store_dword v0, v1, s[{srd}:{srd+3}], s98 offen offset:{4*i}")
```

```python
import os, struct
TB = 2688
F_KV = 0
F_REC = 0x2A000
F_YF = 0x2F000
F_OF = 0x30000
F_YP = 0x40000
F_O = 0x100000
WS_TS = 0x600000
WS_SIZE = 0x640000
def vr(a, n): return f"v[{a}:{a+n-1}]"
def sr(a, n): return f"s[{a}:{a+n-1}]"
def p2(a): return f"v[{a}:{a+1}]"
def f32(x): return "0x%08x" % struct.unpack("<I", struct.pack("<f", x))[0]
TS = int(os.environ.get("TS", "0"))
def ts_mark(A, n):
    if TS:
        A(f"s_memrealtime s[{80+2*n}:{81+2*n}]")
        if n: A("s_waitcnt lgkmcnt(0)")
def ts_end(A, srd):
    if not TS: return
    A(f"""
    s_memrealtime s[94:95]
    s_mov_b64 exec, -1
    v_lshrrev_b32 v1, 6, v0
    s_lshl_b32 s98, s2, 3
    v_add_u32 v1, s98, v1
    v_lshlrev_b32 v1, 5, v1
    s_mov_b32 s98, {WS_TS}
    s_waitcnt lgkmcnt(0)
    """)
    for i in range(8):
        A(f"v_mov_b32 v0, s{80+2*i}")
        A(f"buffer_store_dword v0, v1, s[{srd}:{srd+3}], s98 offen offset:{4*i}")
```

```python
from asmlib import Asm
from common import *
import math

def rbf(A, dst, src):
    A(f"v_cvt_pk_bf16_f32 v{dst}, v{src}, v{src}")
    A(f"v_lshlrev_b32 v{dst}, 16, v{dst}")

def dma_voffs(A, VW, lane, t0, s_col):
    for i in range(5):
        q, rho, c, h = t0, t0+1, t0+2, t0+3
        A(f"""
        v_add_u32 v{q}, {64*i}, v{lane}
        v_mul_u32_u24 v{rho}, 6554, v{q}
        v_lshrrev_b32 v{rho}, 16, v{rho}
        v_mul_u32_u24 v{c}, 10, v{rho}
        v_sub_u32 v{c}, v{q}, v{c}
        v_lshrrev_b32 v{h}, 4, v{rho}
        v_bfe_u32 v{q}, v{rho}, 2, 2
        v_and_b32 v{rho}, 3, v{rho}
        v_lshl_add_u32 v{rho}, v{h}, 2, v{rho}
        v_lshl_add_u32 v{rho}, v{q}, 3, v{rho}
        v_mul_u32_u24 v{rho}, 1280, v{rho}
        v_lshl_add_u32 v{rho}, v{c}, 4, v{rho}
        v_add_u32 v{VW+i}, s{s_col}, v{rho}
        """)

def gen_k1(prefetch=True):
    A = Asm()
    L_WQ, L_E, L_WR, L_ONES, L_CS = 0, 102400, 128000, 130048, 132096
    LDS = 132608
    X = 8; T = 88; EF = 108; SF = 112; ACC = 116
    CS0 = 136; CS1 = 140; AE = 144; CSE = 148; AS = 152
    D2 = 156; ONE = 160; VW = 164; VT = 169
    VE = 174; VS = 175; VX = 176; VL16 = 177; VL4 = 178; SWR = 179
    WR0 = 180; t0 = 188; CSX = 208
    NV = 220
    lane, g, l15 = 2, 3, 4
    A.label("proj_kernel")
    A(f"""
    s_cmp_ge_u32 s2, 256
    s_cbranch_scc1 K1_END
    """)
    ts_mark(A, 0)
    A(f"""
    s_load_dwordx4 s[28:31], s[0:1], 0
    s_load_dwordx4 s[32:35], s[0:1], 16
    s_load_dwordx2 s[36:37], s[0:1], 48
    s_load_dwordx2 s[38:39], s[0:1], 96
    s_getpc_b64 s[40:41]
    """)
    A.label("K1_PC")
    A(f"""
    v_lshrrev_b32 v1, 6, v0
    v_and_b32 v{lane}, 63, v0
    """)
    if prefetch:
        A(f"""
        v_lshlrev_b32 v5, 7, v0
        v_min_u32 v5, CODE_END-K1_PC-4, v5
        global_load_dword v6, v5, s[40:41]
        """)
    A(f"""
    v_readfirstlane_b32 s26, v1
    s_and_b32 s3, s2, 7
    s_lshr_b32 s27, s2, 3
    s_and_b32 s25, s27, 7
    s_lshr_b32 s27, s27, 3
    s_lshl_b32 s24, s3, 2
    s_add_u32 s24, s24, s27
    v_lshrrev_b32 v{g}, 4, v{lane}
    v_and_b32 v{l15}, 15, v{lane}
    v_lshlrev_b32 v{VL16}, 4, v{lane}
    v_lshlrev_b32 v{VL4}, 2, v{lane}
    s_mul_i32 s42, s25, 160
    v_mul_u32_u24 v{VX}, 1280, v{l15}
    v_lshl_add_u32 v{VX}, v{g}, 4, v{VX}
    """)
    dma_voffs(A, VW, lane, t0, 42)
    A(f"""
    v_lshrrev_b32 v{t0}, 2, v{lane}
    v_and_b32 v{t0+1}, 3, v{lane}
    v_mul_u32_u24 v{t0+2}, 160, v{t0}
    v_lshl_add_u32 v{t0+2}, v{t0+1}, 3, v{t0+2}
    """)
    for i in range(5):
        A(f"""
        s_add_u32 s{44+i}, s26, {i}
        s_cmp_ge_u32 s{44+i}, 5
        s_cselect_b32 s43, 5, 0
        s_sub_u32 s{44+i}, s{44+i}, s43
        s_lshl_b32 s{44+i}, s{44+i}, 5
        v_add_u32 v{VT+i}, s{44+i}, v{t0+2}
        """)
    A(f"""
    v_and_b32 v{t0}, 3, v{t0}
    v_lshl_add_u32 v{t0}, v{g}, 3, v{t0}
    v_mul_u32_u24 v{t0}, 40, v{t0}
    v_lshlrev_b32 v{t0+1}, 3, v{t0+1}
    s_cmp_lt_u32 s25, 2
    s_cselect_b32 s43, 0xffff, 0
    s_cselect_b32 s49, 0, 32
    s_add_u32 s49, s49, {L_E}
    v_and_b32 v{t0+1}, s43, v{t0+1}
    v_add3_u32 v{VE}, v{t0}, v{t0+1}, s49
    v_cmp_eq_u32 vcc, 0, v{l15}
    v_mov_b32 v{t0}, {L_ONES}
    v_mov_b32 v{t0+1}, {L_WR}
    v_cndmask_b32 v{t0}, v{t0}, v{t0+1}, vcc
    v_lshl_add_u32 v{VS}, v{g}, 4, v{t0}
    """)
    for j in range(4): A(f"v_mov_b32 v{ONE+j}, 0x3f803f80")
    for j in range(4): A(f"v_mov_b32 v{D2+j}, 0")
    A(f"""
    v_lshlrev_b32 v{t0}, 3, v0
    v_add_u32 v{t0}, {L_ONES}, v{t0}
    ds_write_b64 v{t0}, {vr(ONE,2)}
    s_mov_b32 s6, 2621440
    s_mov_b32 s7, 0x20000
    s_mov_b32 s10, 819200
    s_mov_b32 s11, 0x20000
    s_cmp_lt_u32 s25, 4
    s_cselect_b32 s14, 25600, 0
    s_mov_b32 s15, 0x20000
    s_mov_b32 s18, 1280
    s_mov_b32 s19, 0x20000
    s_mov_b32 s22, {WS_SIZE}
    s_mov_b32 s23, 0x20000
    s_mul_i32 s50, s24, 81920
    s_mul_i32 s51, s26, 20480
    s_add_u32 s50, s50, s51
    s_mul_i32 s51, s26, 40960
    s_mul_i32 s52, s26, 5120
    s_mul_i32 s53, s26, 1280
    s_and_b32 s54, s26, 1
    s_lshl_b32 s54, s54, 10
    s_add_u32 s55, s54, {L_WR}
    s_bitcmp1_b32 s25, 0
    s_waitcnt lgkmcnt(0)
    s_mov_b64 s[4:5], s[28:29]
    s_mov_b64 s[8:9], s[30:31]
    s_cselect_b64 s[12:13], s[34:35], s[32:33]
    s_mov_b64 s[16:17], s[36:37]
    s_mov_b64 s[20:21], s[38:39]
    s_mov_b32 m0, s55
    s_nop 0
    buffer_load_dwordx4 v{VL16}, s[16:19], s54 offen lds
    """)
    for s in range(5):
        for k in range(4):
            ks = 4*s + k
            A(f"buffer_load_dwordx4 {vr(X+4*ks,4)}, v{VX}, s[4:7], s50 offen offset:{ks*64}")
        for i in range(5):
            A(f"""
            s_add_u32 m0, s52, {L_WQ + s*20480 + i*1024}
            s_nop 0
            buffer_load_dwordx4 v{VW+i}, s[8:11], s51 offen lds
            """)
        A(f"""
        s_add_u32 m0, s53, {L_E}
        s_add_u32 s51, s51, {4*40960}
        buffer_load_dwordx4 v{VL16}, s[12:15], s53 offen lds
        buffer_load_dword v{VL4}, s[12:15], s53 offen offset:1024 lds
        s_add_u32 s53, s53, 5120
        """)
    def rd_tile(i, n):
        if n == 10: A(f"v_add_u32 v{VT+i}, 51200, v{VT+i}")
        o = (n % 10) * 5120
        A(f"ds_read_b64_tr_b16 {vr(T+4*i,2)}, v{VT+i} offset:{o}")
        A(f"ds_read_b64_tr_b16 {vr(T+4*i+2,2)}, v{VT+i} offset:{o+2560}")
    def rd_e(n):
        A(f"ds_read_b64_tr_b16 {vr(EF,2)}, v{VE} offset:{n*1280}")
        A(f"ds_read_b64_tr_b16 {vr(EF+2,2)}, v{VE} offset:{n*1280+160}")
    def rd_s(n):
        A(f"ds_read_b128 {vr(SF,4)}, v{VS} offset:{n*64}")
    def mf(d, a, b, first):
        A(f"v_mfma_f32_16x16x32_bf16 {vr(d,4)}, {vr(a,4)}, {vr(b,4)}, {'0' if first else vr(d,4)}")
    A(f"""
    v_lshlrev_b32 v{t0}, 5, v{lane}
    v_add_u32 v{t0}, {L_WR}, v{t0}
    s_waitcnt vmcnt(44) lgkmcnt(0)
    s_barrier
    """)
    ts_mark(A, 1)
    A(f"""
    ds_read_b128 {vr(WR0,4)}, v{t0}
    ds_read_b128 {vr(WR0+4,4)}, v{t0} offset:16
    """)
    for i in range(5): rd_tile(i, 0)
    rd_e(0); rd_s(0)
    for n in range(20):
        last = n == 19
        if n % 4 == 3 and not last:
            s = (n + 1) // 4
            A(f"s_waitcnt vmcnt({(4-s)*11})")
            A("s_barrier")
        xb = X + 4*n
        cnt = 11
        for i in range(5):
            A(f"s_waitcnt lgkmcnt({cnt})")
            mf(ACC+4*i, T+4*i, xb, n == 0)
            if i == 0: mf(CS0, T, ONE, n == 0)
            if i == 1: mf(CS1, T+4, ONE, n == 0)
            if not last: rd_tile(i, n+1)
            else: cnt -= 2
            if i >= 1: A(f"v_dot2_f32_bf16 v{D2+i-1}, v{xb+i-1}, v{xb+i-1}, v{D2+i-1}")
            if n == 0 and i == 2:
                A(f"v_mov_b32 v{SWR}, 0")
                for j in range(8): A(f"v_dot2_f32_bf16 v{SWR}, v{WR0+j}, v{ONE}, v{SWR}")
            if n == 1 and i in (1, 2, 3, 4):
                A(f"v_add_f32_dpp v{SWR}, v{SWR}, v{SWR} row_ror:{[8,4,2,1][i-1]} row_mask:0xf bank_mask:0xf")
            if n == 2 and i == 1:
                A(f"v_mov_b32 v{t0}, v{SWR}")
            if n == 2 and i == 2:
                A(f"v_permlane16_swap_b32 v{t0}, v{SWR}")
                A(f"v_add_f32 v{SWR}, v{SWR}, v{t0}")
                A(f"v_mov_b32 v{t0}, v{SWR}")
            if n == 2 and i == 3:
                A(f"v_permlane32_swap_b32 v{t0}, v{SWR}")
                A(f"v_add_f32 v{SWR}, v{SWR}, v{t0}")
        A(f"s_waitcnt lgkmcnt({cnt})")
        mf(AE, EF, xb, n == 0)
        mf(CSE, EF, ONE, n == 0)
        if not last:
            rd_e(n+1)
            A("s_waitcnt lgkmcnt(12)")
        else:
            A("s_waitcnt lgkmcnt(0)")
        mf(AS, SF, xb, n == 0)
        if not last: rd_s(n+1)
    ts_mark(A, 2)
    mean, mbf, rden, var, rc = t0, t0+2, t0+3, t0+4, t0+5
    vg16 = t0+6; va = t0+7; q0 = t0+8
    A(f"""
    v_lshlrev_b32 v{vg16}, 4, v{g}
    s_lshl_b32 s43, s26, 6
    s_add_u32 s43, s43, {L_CS}
    v_add_u32 v{va}, s43, v{vg16}
    ds_write_b128 v{va}, {vr(CS0,4)}
    ds_write_b128 v{va}, {vr(CS1,4)} offset:64
    v_add_f32 v{D2}, v{D2}, v{D2+1}
    v_add_f32 v{D2+2}, v{D2+2}, v{D2+3}
    v_add_f32 v{D2}, v{D2}, v{D2+2}
    v_mov_b32 v{D2+1}, v{D2}
    v_permlane16_swap_b32 v{D2}, v{D2+1}
    v_add_f32 v{D2}, v{D2}, v{D2+1}
    v_mov_b32 v{D2+1}, v{D2}
    v_permlane32_swap_b32 v{D2}, v{D2+1}
    v_add_f32 v{D2}, v{D2}, v{D2+1}
    v_mul_f32 v{mean}, {f32(1/640)}, v{AS+1}
    s_waitcnt lgkmcnt(0)
    s_barrier
    """)
    for i in range(2, 5):
        A(f"""
        s_lshl_b32 s43, s{44+i}, 1
        s_add_u32 s43, s43, {L_CS}
        v_add_u32 v{va}, s43, v{vg16}
        ds_read_b128 {vr(CSX+4*(i-2),4)}, v{va}
        """)
    rbf(A, mbf, mean)
    A(f"""
    v_mul_f32 v{var}, {f32(1/640)}, v{D2}
    v_fma_f32 v{var}, -v{mean}, v{mean}, v{var}
    v_max_f32 v{var}, 0, v{var}
    """)
    rbf(A, var, var)
    A(f"v_add_f32 v{var}, {f32(1e-5)}, v{var}")
    rbf(A, var, var)
    A(f"v_sqrt_f32 v{var}, v{var}")
    rbf(A, var, var)
    A(f"""
    v_rcp_f32 v{rden}, v{var}
    v_mul_u32_u24 v{va}, 1280, v{l15}
    v_lshl_add_u32 v{va}, v{g}, 3, v{va}
    v_mul_f32 v{rc}, {f32(20**-0.5 * math.log2(math.e))}, v{rden}
    s_add_u32 s50, s50, s42
    """)
    for i in range(5):
        cs = [CS0, CS1, CSX, CSX+4, CSX+8][i]
        if i == 2: A("s_waitcnt lgkmcnt(0)")
        for r in range(4): A(f"v_fma_f32 v{q0+r}, -v{mbf}, v{cs+r}, v{ACC+4*i+r}")
        for r in range(4): A(f"v_mul_f32 v{q0+r}, v{q0+r}, v{rc}")
        A(f"""
        v_cvt_pk_bf16_f32 v{ACC+4*i}, v{q0}, v{q0+1}
        v_cvt_pk_bf16_f32 v{ACC+4*i+1}, v{q0+2}, v{q0+3}
        s_add_u32 s43, s50, s{44+i}
        buffer_store_dwordx2 {vr(ACC+4*i,2)}, v{va}, s[20:23], s43 offen
        """)
    ts_end(A, 20, 0)
    A(f"""
    s_cmp_ge_u32 s25, 4
    s_cbranch_scc1 K1_CB45
    """)
    for r in range(4): A(f"v_fma_f32 v{q0+r}, -v{mbf}, v{CSE+r}, v{AE+r}")
    for r in range(4): A(f"v_mul_f32 v{q0+r}, v{q0+r}, v{rden}")
    A(f"""
    v_cvt_pk_bf16_f32 v{q0}, v{q0}, v{q0+1}
    v_cvt_pk_bf16_f32 v{q0+1}, v{q0+2}, v{q0+3}
    s_lshr_b32 s43, s26, 1
    s_lshl_b32 s56, s24, 1
    s_add_u32 s43, s43, s56
    s_mul_i32 s43, s43, {TILE_B}
    s_add_u32 s43, s43, {WS_KV}
    s_and_b32 s56, s26, 1
    s_bitcmp1_b32 s25, 0
    s_cbranch_scc1 K1_V
    s_lshl_b32 s57, s56, 4
    v_add_u32 v{va}, s57, v{l15}
    v_lshrrev_b32 v{q0+2}, 1, v{g}
    v_and_b32 v{q0+3}, 1, v{g}
    v_lshl_add_u32 v{q0+2}, v{q0+2}, 5, v{va}
    v_lshlrev_b32 v{q0+2}, 4, v{q0+2}
    v_lshl_add_u32 v{q0+2}, v{q0+3}, 3, v{q0+2}
    v_lshlrev_b32 v{va}, 3, v{va}
    v_add_u32 v{va}, 1024, v{va}
    s_cmp_eq_u32 s25, 0
    s_cselect_b64 vcc, -1, 0
    v_cndmask_b32 v{va}, v{va}, v{q0+2}, vcc
    buffer_store_dwordx2 {vr(q0,2)}, v{va}, s[20:23], s43 offen
    s_endpgm
    """)
    A.label("K1_V")
    A(f"""
    s_mul_i32 s56, s56, 672
    s_add_u32 s43, s43, s56
    v_and_b32 v{va}, 3, v{l15}
    v_lshrrev_b32 v{q0+2}, 3, v{l15}
    v_lshl_add_u32 v{va}, v{q0+2}, 2, v{va}
    v_lshlrev_b32 v{va}, 1, v{va}
    v_bfe_u32 v{q0+2}, v{l15}, 2, 1
    v_mul_u32_u24 v{q0+2}, 336, v{q0+2}
    v_add_u32 v{va}, v{va}, v{q0+2}
    v_lshlrev_b32 v{q0+2}, 6, v{g}
    s_cmp_eq_u32 s25, 1
    s_cselect_b32 s56, 0xffff, 0
    s_cselect_b32 s57, 0, 256
    v_and_b32 v{q0+2}, s56, v{q0+2}
    v_add3_u32 v{va}, v{va}, v{q0+2}, s57
    buffer_store_short v{q0}, v{va}, s[20:23], s43 offen offset:1280
    buffer_store_short_d16_hi v{q0}, v{va}, s[20:23], s43 offen offset:1296
    buffer_store_short v{q0+1}, v{va}, s[20:23], s43 offen offset:1312
    buffer_store_short_d16_hi v{q0+1}, v{va}, s[20:23], s43 offen offset:1328
    s_cbranch_scc1 K1_END
    buffer_store_short v{ONE}, v{va}, s[20:23], s43 offen offset:1344
    s_endpgm
    """)
    A.label("K1_CB45")
    A(f"""
    s_cmp_eq_u32 s25, 4
    s_cbranch_scc1 K1_KEY
    s_cmp_eq_u32 s25, 5
    s_cbranch_scc0 K1_END
    s_lshl_b32 s43, s24, 9
    s_lshl_b32 s56, s26, 7
    s_add_u32 s43, s43, s56
    s_add_u32 s43, s43, {WS_ST}
    v_lshlrev_b32 v{va}, 3, v{l15}
    buffer_store_dwordx2 {vr(mbf,2)}, v{va}, s[20:23], s43 offen
    s_endpgm
    """)
    A.label("K1_KEY")
    A(f"""
    v_fma_f32 v{q0}, -v{mbf}, v{SWR}, v{AS}
    v_mul_f32 v{q0}, v{q0}, v{rden}
    v_cvt_pk_bf16_f32 v{q0+1}, v{q0}, v{q0}
    v_ashrrev_i32 v{q0+2}, 31, v{q0+1}
    v_or_b32 v{q0+2}, 0x80000000, v{q0+2}
    v_xor_b32 v{q0+1}, v{q0+1}, v{q0+2}
    v_and_b32 v{q0+1}, 0xffff0000, v{q0+1}
    s_lshl_b32 s43, s24, 6
    s_lshl_b32 s56, s26, 4
    s_add_u32 s43, s43, s56
    s_sub_u32 s43, 0xffff, s43
    v_sub_u32 v{q0+2}, s43, v{l15}
    v_or_b32 v{q0+1}, v{q0+1}, v{q0+2}
    """)
    for sh in (8, 4, 2, 1):
        A(f"v_max_u32_dpp v{q0+1}, v{q0+1}, v{q0+1} row_ror:{sh} row_mask:0xf bank_mask:0xf")
    A(f"""
    s_lshl_b32 s43, s24, 4
    s_lshl_b32 s56, s26, 2
    s_add_u32 s43, s43, s56
    s_add_u32 s43, s43, {WS_KEY}
    v_mov_b32 v{va}, 0
    s_mov_b64 exec, 1
    buffer_store_dword v{q0+1}, v{va}, s[20:23], s43 offen
    """)
    A.label("K1_END")
    A("s_endpgm")
    return A, LDS, NV
```

```python
from asmlib import Asm
from common import *
from k1 import rbf
import math

SLOT = 45056
GRP = 16 * TILE_B
L_G = 3 * SLOT
L_P = L_G + 20480
LDS2 = L_P + 2048
LOG2E = math.log2(math.e)

def gen_k2():
    A = Asm()
    SA, SB, OA, OB, PA, PB = 16, 32, 48, 64, 80, 88
    QA0, QA1, QB0, QB1 = 96, 100, 104, 108
    KB = [112, 120]; VB = [128, 136]
    vK0, vK1, vV = 144, 145, 146
    gK0, gK1, gV = 147, 148, 149
    vo, vo2 = 150, 151
    NV = 152
    lane, head, hh = 2, 3, 4
    def mf(d, a, b, c=None):
        A(f"v_mfma_f32_32x32x16_bf16 {vr(d,16)}, {vr(a,4)}, {vr(b,4)}, {'0' if c is None else vr(c,16)}")
    A.label("attn_kernel")
    A(f"""
    s_cmp_ge_u32 s2, 256
    s_cbranch_scc1 K2_END
    """)
    ts_mark(A, 0)
    A(f"""
    s_load_dwordx2 s[4:5], s[0:1], 96
    s_load_dwordx2 s[8:9], s[0:1], 0
    s_load_dwordx4 s[28:31], s[0:1], 56
    s_load_dwordx2 s[16:17], s[0:1], 72
    v_lshrrev_b32 v1, 6, v0
    v_and_b32 v{lane}, 63, v0
    v_readfirstlane_b32 s3, v1
    s_mov_b32 s6, {WS_SIZE}
    s_mov_b32 s7, 0x20000
    s_and_b32 s20, s2, 7
    s_lshr_b32 s21, s2, 3
    v_lshlrev_b32 v{vK0}, 4, v{lane}
    s_cmp_ge_u32 s3, 4
    s_cbranch_scc1 K2_HELP
    s_lshl_b32 s22, s20, 8
    s_lshl_b32 s23, s21, 3
    s_add_u32 s22, s22, s23
    s_lshl_b32 s23, s3, 1
    s_add_u32 s22, s22, s23
    s_mul_i32 s22, s22, 1280
    s_mov_b32 s23, {WS_KV}
    v_and_b32 v{head}, 31, v{lane}
    v_lshrrev_b32 v{hh}, 5, v{lane}
    v_mul_u32_u24 v5, 40, v{head}
    v_lshl_add_u32 v6, v{hh}, 30, v5
    v_lshl_add_u32 v{vo}, v{hh}, 3, v5
    v_lshl_add_u32 v5, v{hh}, 4, v5
    v_lshlrev_b32 v{vK1}, 3, v{head}
    v_min_u32 v{vV}, 20, v{head}
    v_lshlrev_b32 v{vV}, 4, v{vV}
    v_mul_u32_u24 v7, 336, v{hh}
    v_add_u32 v{vV}, v{vV}, v7
    s_waitcnt lgkmcnt(0)
    buffer_load_dwordx4 {vr(KB[0],4)}, v{vK0}, s[4:7], s23 offen
    buffer_load_dwordx2 {vr(KB[0]+4,2)}, v{vK1}, s[4:7], s23 offen offset:1024
    buffer_load_dwordx4 {vr(QA0,4)}, v5, s[4:7], s22 offen
    buffer_load_dwordx2 {vr(QA1,2)}, v6, s[4:7], s22 offen offset:32
    buffer_load_dwordx4 {vr(QB0,4)}, v5, s[4:7], s22 offen offset:1280
    buffer_load_dwordx2 {vr(QB1,2)}, v6, s[4:7], s22 offen offset:1312
    buffer_load_dwordx4 {vr(VB[0],4)}, v{vV}, s[4:7], s23 offen offset:1280
    buffer_load_dwordx4 {vr(VB[0]+4,4)}, v{vV}, s[4:7], s23 offen offset:1952
    v_mov_b32 v{vo2}, v6
    v_mov_b32 v{gK0}, v{vK0}
    v_mov_b32 v{gK1}, v{vK1}
    v_mov_b32 v{gV}, v{vV}
    v_cmp_eq_u32 vcc, 0, v{hh}
    v_mov_b32 v7, 0x3f80
    v_cndmask_b32 v{KB[0]+6}, 0, v7, vcc
    v_cndmask_b32 v{KB[1]+6}, 0, v7, vcc
    """)
    for r in (KB[0]+7, KB[1]+7, QA1+2, QA1+3, QB1+2, QB1+3): A(f"v_mov_b32 v{r}, 0")
    for r in range(32): A(f"v_mov_b32 v{OA+r}, 0")
    for r in range(8): A(f"v_mov_b32 v{PB+r}, 0")
    for r in range(8): A(f"v_mov_b32 v{VB[1]+r}, 0")
    A("s_waitcnt vmcnt(4)")
    mf(SA, KB[0], QA0); mf(SA, KB[0]+4, QA1, SA)
    A("s_waitcnt vmcnt(2)")
    mf(SB, KB[0], QB0); mf(SB, KB[0]+4, QB1, SB)
    def vmax16(t, S, init=None):
        if init is None:
            A(f"v_max3_f32 v{t}, v{S}, v{S+1}, v{S+2}")
            for r in range(3, 15, 2): A(f"v_max3_f32 v{t}, v{t}, v{S+r}, v{S+r+1}")
            A(f"v_max_f32 v{t}, v{t}, v{S+15}")
        else:
            for r in range(0, 16, 2): A(f"v_max3_f32 v{t}, v{t}, v{S+r}, v{S+r+1}")
    def swapmax(t, t2):
        A(f"""
        v_mov_b32 v{t2}, v{t}
        v_permlane32_swap_b32 v{t}, v{t2}
        v_max_f32 v{t}, v{t}, v{t2}
        """)
    vmax16(8, SA); swapmax(8, 9)
    A(f"v_cvt_pk_bf16_f32 v{QA1+2}, -v8, 0")
    mf(SA, KB[0], QA0); mf(SA, KB[0]+4, QA1, SA)
    vmax16(10, SB); swapmax(10, 11)
    A(f"v_cvt_pk_bf16_f32 v{QB1+2}, -v10, 0")
    A(f"""
    s_mov_b32 s24, 0
    s_mov_b32 s26, {-2*SLOT & 0xffffffff}
    s_mov_b32 s27, {SLOT}
    s_waitcnt vmcnt(0)
    s_barrier
    """)
    ts_mark(A, 1)
    clk_mark(A, 4)
    A.label("K2_LOOP")
    def phase(S, P, mfs, reads, pre=None):
        e = [f"v_exp_f32 v{S+r}, v{S+r}" for r in range(16)]
        c = [f"v_cvt_pk_bf16_f32 v{P+r}, v{S+2*r}, v{S+2*r+1}" for r in range(8)]
        if pre: A(pre)
        mfs[0]()
        for r_ in reads: A(r_)
        for x in e[0:4]: A(x)
        mfs[1]()
        for x in (e[4], e[5], c[0], e[6], c[1], e[7]): A(x)
        mfs[2]()
        for x in (e[8], e[9], c[2], e[10], c[3], e[11]): A(x)
        mfs[3]()
        for x in (e[12], e[13], c[4], e[14], c[5], e[15], c[6], c[7]): A(x)
    for t in range(16):
        p = t & 1; q = p ^ 1
        o = ((t + 1) % 16) * TILE_B
        pre = None
        if t == 15:
            pre = f"""
            s_cmp_eq_u32 s24, 2
            s_cselect_b32 s25, s26, s27
            s_waitcnt lgkmcnt(0)
            s_barrier
            v_add_u32 v{vK0}, s25, v{vK0}
            v_add_u32 v{vK1}, s25, v{vK1}
            v_add_u32 v{vV}, s25, v{vV}
            """
        phase(SA, PA,
              [lambda: mf(SB, KB[p], QB0), lambda: mf(SB, KB[p]+4, QB1, SB),
               lambda: mf(OB, VB[q], PB, OB), lambda: mf(OB, VB[q]+4, PB+4, OB)],
              [f"ds_read_b128 {vr(KB[q],4)}, v{vK0} offset:{o}",
               f"ds_read_b64 {vr(KB[q]+4,2)}, v{vK1} offset:{o+1024}"], pre)
        phase(SB, PB,
              [lambda: mf(SA, KB[q], QA0), lambda: mf(SA, KB[q]+4, QA1, SA),
               lambda: mf(OA, VB[p], PA, OA), lambda: mf(OA, VB[p]+4, PA+4, OA)],
              [f"ds_read_b128 {vr(VB[q],4)}, v{vV} offset:{o+1280}",
               f"ds_read_b128 {vr(VB[q]+4,4)}, v{vV} offset:{o+1952}"], "s_waitcnt lgkmcnt(0)")
    A(f"""
    s_add_u32 s24, s24, 1
    s_cmp_lt_u32 s24, 4
    s_cbranch_scc1 K2_LOOP
    """)
    mf(OB, VB[1], PB, OB); mf(OB, VB[1]+4, PB+4, OB)
    ts_mark(A, 2)
    clk_mark(A, 5)
    A(f"""
    s_mov_b32 s26, {f32(2.0**30)}
    s_mov_b32 s27, {f32(2.0**-30)}
    v_cmp_nlt_f32 s[32:33], v{OA+12}, s26
    v_cmp_ngt_f32 s[34:35], v{OA+12}, s27
    s_waitcnt lgkmcnt(0)
    v_cmp_nlt_f32 s[36:37], v{OB+12}, s26
    v_cmp_ngt_f32 s[38:39], v{OB+12}, s27
    s_or_b64 s[32:33], s[32:33], s[34:35]
    s_or_b64 s[36:37], s[36:37], s[38:39]
    s_or_b64 s[32:33], s[32:33], s[36:37]
    s_cbranch_scc1 K2_FB
    """)
    A.label("K2_STORE")
    A(f"s_add_u32 s22, s22, {WS_O}")
    for O, off in ((OA, 0), (OB, 1280)):
        A(f"v_rcp_f32 v8, v{O+12}")
        for r in range(12): A(f"v_mul_f32 v{O+r}, v{O+r}, v8")
        for r in range(6): A(f"v_cvt_pk_bf16_f32 v{O+r}, v{O+2*r}, v{O+2*r+1}")
        A(f"""
        buffer_store_dwordx2 {vr(O,2)}, v{vo}, s[4:7], s22 offen offset:{off}
        buffer_store_dwordx2 {vr(O+2,2)}, v{vo}, s[4:7], s22 offen offset:{off+16}
        buffer_store_dwordx2 {vr(O+4,2)}, v{vo2}, s[4:7], s22 offen offset:{off+32}
        """)
    ts_end(A, 4, 1, extra=2)
    A("s_endpgm")
    A.label("K2_FB")
    A(f"""
    v_mov_b32 v{QA1+2}, 0
    v_mov_b32 v{QB1+2}, 0
    v_mov_b32 v8, 0xff800000
    v_mov_b32 v10, 0xff800000
    s_mov_b32 s23, {WS_KV}
    """)
    A.label("K2_FB1")
    A(f"""
    buffer_load_dwordx4 {vr(KB[0],4)}, v{gK0}, s[4:7], s23 offen
    buffer_load_dwordx2 {vr(KB[0]+4,2)}, v{gK1}, s[4:7], s23 offen offset:1024
    s_add_u32 s23, s23, {TILE_B}
    s_waitcnt vmcnt(0)
    """)
    mf(SA, KB[0], QA0); mf(SA, KB[0]+4, QA1, SA)
    mf(SB, KB[0], QB0); mf(SB, KB[0]+4, QB1, SB)
    vmax16(8, SA, 1); vmax16(10, SB, 1)
    A(f"""
    s_cmp_lt_u32 s23, {WS_KV + 64*TILE_B}
    s_cbranch_scc1 K2_FB1
    """)
    swapmax(8, 9); swapmax(10, 11)
    for r in range(32): A(f"v_mov_b32 v{OA+r}, 0")
    A(f"s_mov_b32 s23, {WS_KV}")
    A.label("K2_FB2")
    A(f"""
    buffer_load_dwordx4 {vr(KB[0],4)}, v{gK0}, s[4:7], s23 offen
    buffer_load_dwordx2 {vr(KB[0]+4,2)}, v{gK1}, s[4:7], s23 offen offset:1024
    buffer_load_dwordx4 {vr(VB[0],4)}, v{gV}, s[4:7], s23 offen offset:1280
    buffer_load_dwordx4 {vr(VB[0]+4,4)}, v{gV}, s[4:7], s23 offen offset:1952
    s_add_u32 s23, s23, {TILE_B}
    s_waitcnt vmcnt(0)
    """)
    mf(SA, KB[0], QA0); mf(SA, KB[0]+4, QA1, SA)
    mf(SB, KB[0], QB0); mf(SB, KB[0]+4, QB1, SB)
    for S, P, m, O in ((SA, PA, 8, OA), (SB, PB, 10, OB)):
        for r in range(16): A(f"v_sub_f32 v{S+r}, v{S+r}, v{m}")
        for r in range(16): A(f"v_exp_f32 v{S+r}, v{S+r}")
        for r in range(8): A(f"v_cvt_pk_bf16_f32 v{P+r}, v{S+2*r}, v{S+2*r+1}")
        mf(O, VB[0], P, O); mf(O, VB[0]+4, P+4, O)
    A(f"""
    s_cmp_lt_u32 s23, {WS_KV + 64*TILE_B}
    s_cbranch_scc1 K2_FB2
    s_branch K2_STORE
    """)
    KEY = 4; XF = 16; WD = 40; BF = 56; ACC = 64; ST = 68; T = 72; Y = 84
    vL8, vGU, vWD, vX, vTR, vP = 8, 9, 10, 11, 12, 13
    l15, g = 14, 15
    A.label("K2_HELP")
    A(f"""
    s_sub_u32 s3, s3, 4
    v_lshlrev_b32 v{vL8}, 3, v{lane}
    s_mul_i32 s22, s3, 11264
    s_add_u32 s23, s22, {WS_KV}
    s_mov_b32 s33, {WS_KEY}
    s_mul_i32 s24, s20, 27
    s_add_u32 s24, s24, s21
    s_mul_i32 s25, s20, 5
    s_add_u32 s25, s25, s21
    s_add_u32 s25, s25, {216-27}
    s_cmp_lt_u32 s21, 27
    s_cselect_b32 s25, s24, s25
    s_cselect_b32 s14, {640*3456}, 0
    s_cselect_b32 s18, {1728*1280}, 0
    s_mov_b32 s15, 0x20000
    s_mov_b32 s19, 0x20000
    s_mov_b32 s10, 2621440
    s_mov_b32 s11, 0x20000
    s_bitcmp1_b32 s3, 1
    s_waitcnt lgkmcnt(0)
    s_cselect_b64 s[12:13], s[30:31], s[28:29]
    buffer_load_dwordx2 {vr(KEY,2)}, v{vL8}, s[4:7], s33 offen
    """)
    def dma_group(gi, slot):
        for qd in range(3):
            A(f"""
            s_add_u32 m0, s22, {slot*SLOT + qd*4096}
            s_add_u32 s26, s23, {gi*GRP + qd*4096}
            """)
            for r in range(4 if qd < 2 else 3):
                A(f"buffer_load_dwordx4 v{vK0}, s[4:7], s26 offen offset:{r*1024} lds")
    for gi in range(3): dma_group(gi, gi)
    A(f"""
    v_mul_u32_u24 v{vGU}, 3456, v{lane}
    s_lshl_b32 s26, s24, 4
    s_and_b32 s27, s3, 1
    s_mul_i32 s27, s27, {320*3456}
    s_add_u32 s26, s26, s27
    s_mul_i32 s27, s3, 5120
    s_add_u32 s27, s27, {L_G}
    """)
    for i in range(5):
        A(f"""
        s_add_u32 m0, s27, {i*1024}
        s_nop 0
        buffer_load_dwordx4 v{vGU}, s[12:15], s26 offen lds
        s_add_u32 s26, s26, {64*3456}
        """)
    A(f"""
    s_mul_i32 s26, s24, 10240
    s_mul_i32 s27, s3, 320
    s_add_u32 s26, s26, s27
    s_add_u32 s34, s26, 5120
    """)
    for f in range(8):
        A(f"buffer_load_dwordx2 {vr(WD+2*f,2)}, v{vL8}, s[16:19], s{26 if f < 4 else 34} offen offset:{(f%4)*1280}")
    A(f"""
    v_and_b32 v{l15}, 15, v{lane}
    v_lshrrev_b32 v{g}, 4, v{lane}
    v_lshlrev_b32 v{vX}, 4, v{g}
    v_mov_b32 v6, 0
    s_waitcnt vmcnt(46)
    v_max_u32 v{KEY}, v{KEY}, v{KEY+1}
    """)
    for sh in (8, 4, 2, 1):
        A(f"v_max_u32_dpp v{KEY}, v{KEY}, v{KEY} row_ror:{sh} row_mask:0xf bank_mask:0xf")
    A(f"""
    v_mov_b32 v{KEY+1}, v{KEY}
    v_permlane16_swap_b32 v{KEY}, v{KEY+1}
    v_max_u32 v{KEY}, v{KEY}, v{KEY+1}
    v_mov_b32 v{KEY+1}, v{KEY}
    v_permlane32_swap_b32 v{KEY}, v{KEY+1}
    v_max_u32 v{KEY}, v{KEY}, v{KEY+1}
    v_readfirstlane_b32 s35, v{KEY}
    s_andn2_b32 s35, 0x7ff, s35
    s_mul_i32 s36, s35, 1280
    s_add_u32 s36, s36, s27
    s_lshl_b32 s37, s35, 3
    s_add_u32 s37, s37, {WS_ST}
    """)
    for i in range(5):
        A(f"buffer_load_dwordx4 {vr(XF+4*i,4)}, v{vX}, s[8:11], s36 offen offset:{i*64}")
    A(f"""
    buffer_load_dwordx2 {vr(ST,2)}, v6, s[4:7], s37 offen
    s_waitcnt vmcnt(41)
    s_barrier
    """)
    ts_mark(A, 1)
    A(f"""
    s_or_b32 s38, s2, s3
    s_cmp_eq_u32 s38, 0
    s_cselect_b32 s38, 0, 0x40000000
    s_add_u32 s38, s38, {WS_MISC}
    buffer_store_dword v{KEY}, v6, s[4:7], s38 offen
    v_bfe_u32 v{vTR}, v{lane}, 2, 2
    v_lshl_add_u32 v{vTR}, v{g}, 3, v{vTR}
    v_lshlrev_b32 v{vTR}, 4, v{vTR}
    v_and_b32 v7, 1, v{lane}
    v_lshl_add_u32 v{vTR}, v7, 3, v{vTR}
    v_bfe_u32 v7, v{lane}, 1, 1
    v_mul_u32_u24 v7, 10240, v7
    s_mul_i32 s38, s3, 2560
    s_add_u32 s38, s38, {L_G}
    v_add3_u32 v{vTR}, v{vTR}, v7, s38
    s_lshl_b32 s38, s3, 9
    s_add_u32 s38, s38, {L_P}
    v_add_u32 v{vP}, s38, v{vL8}
    v_cmp_eq_u32 vcc, 1, v{l15}
    v_mov_b32 v7, 0x3f803f80
    s_waitcnt vmcnt(0)
    """)
    for r in range(20): A(f"v_cndmask_b32 v{XF+r}, v{XF+r}, v7, vcc")
    A("s_barrier")
    ts_mark(A, 2)
    dma_group(3, 0)
    for i in range(5):
        b = BF + 4 * (i & 1)
        A(f"""
        ds_read_b64_tr_b16 {vr(b,2)}, v{vTR} offset:{i*512}
        ds_read_b64_tr_b16 {vr(b+2,2)}, v{vTR} offset:{i*512+64}
        s_waitcnt lgkmcnt(0)
        v_mfma_f32_16x16x32_bf16 {vr(ACC,4)}, {vr(XF+4*i,4)}, {vr(b,4)}, {'0' if i == 0 else vr(ACC,4)}
        """)
    A(f"""
    v_lshlrev_b32 v7, 3, v{l15}
    v_add_u32 v7, {L_P}, v7
    ds_write_b64 v{vP}, {vr(ACC,2)}
    s_waitcnt vmcnt(0) lgkmcnt(0)
    s_barrier
    """)
    for i in range(4): A(f"ds_read_b64 {vr(T+2*i,2)}, v7 offset:{i*512}")
    A(f"""
    s_mov_b32 s40, 0x05040100
    s_mov_b32 s41, 0x07060302
    s_mul_i32 s25, s25, 2560
    s_mul_i32 s26, s3, 640
    s_add_u32 s25, s25, s26
    s_add_u32 s25, s25, {WS_YP}
    s_waitcnt lgkmcnt(0)
    v_add_f32 v{T}, v{T}, v{T+2}
    v_add_f32 v{T+1}, v{T+1}, v{T+3}
    v_add_f32 v{T+4}, v{T+4}, v{T+6}
    v_add_f32 v{T+5}, v{T+5}, v{T+7}
    v_add_f32 v{T}, v{T}, v{T+4}
    v_add_f32 v{T+1}, v{T+1}, v{T+5}
    v_fma_f32 v{T}, -v{ST}, v{T+1}, v{T}
    v_mul_f32 v{T}, v{T}, v{ST+1}
    """)
    rbf(A, T, T)
    A(f"""
    v_mul_f32 v{T+1}, {f32(-LOG2E)}, v{T}
    v_exp_f32 v{T+1}, v{T+1}
    v_mov_b32_dpp v{T+2}, v{T} row_ror:8 row_mask:0xf bank_mask:0xf
    v_add_f32 v{T+1}, 1.0, v{T+1}
    v_rcp_f32 v{T+1}, v{T+1}
    v_mul_f32 v{T+1}, v{T+1}, v{T}
    """)
    rbf(A, T+1, T+1)
    A(f"""
    v_mul_f32 v{T+1}, v{T+1}, v{T+2}
    v_cvt_pk_bf16_f32 v{T+1}, v{T+1}, v{T+1}
    """)
    for f in range(8): A(f"v_readlane_b32 s{44+f}, v{T+1}, {f}")
    for fp in range(4): A(f"s_pack_hh_b32_b16 s{44+fp}, s{44+2*fp}, s{45+2*fp}")
    for fp in range(4):
        r0, r1 = WD + 4*fp, WD + 4*fp + 2
        for c in range(4):
            A(f"v_perm_b32 v{T+4+c}, v{r1+(c>>1)}, v{r0+(c>>1)}, s{40+(c&1)}")
        for c in range(4):
            A(f"v_dot2_f32_bf16 v{Y+c}, v{T+4+c}, s{44+fp}, {'0' if fp == 0 else f'v{Y+c}'}")
    A(f"""
    s_mov_b32 exec_hi, 0xff
    buffer_store_dwordx4 {vr(Y,4)}, v{vK0}, s[4:7], s25 offen
    """)
    ts_end(A, 4, 1)
    A.label("K2_END")
    A("s_endpgm")
    return A, LDS2, NV
```

```python
from asmlib import Asm
from common import *
from k1 import rbf, dma_voffs
import math
LOG2E = math.log2(math.e)

def ar(a, n): return f"a[{a}:{a+n-1}]"
def p2(a): return f"v[{a}:{a+1}]"

def gen_k3():
    A = Asm()
    L_Y = 102400; L_G2 = L_Y + 3840; LDS = L_G2 + 512
    lane, g, l15 = 2, 3, 4
    VW = 8; VT = 13; VX = 14; vxo = 15; vst = 16; vy = 17
    T = 20; ACC = 40; XP = 60; XF = 70; G = 90; ST = 110; t0 = 112
    CST = 126
    YL = 128; SP = 200
    NV = 224; NA = 80
    E = 20
    def unpack(d, s):
        A(f"v_and_b32 v{d+1}, 0xffff0000, v{s}")
        A(f"v_lshlrev_b32 v{d}, 16, v{s}")
    def gpair(xf, st, gd, a, b, y=None):
        A(f"v_pk_add_f32 {p2(a)}, {p2(xf)}, {p2(st)} op_sel_hi:[1,0] neg_lo:[0,1] neg_hi:[0,1]")
        A(f"v_cvt_pk_bf16_f32 v{a}, v{a}, v{a+1}")
        unpack(a, a)
        A(f"v_pk_mul_f32 {p2(a)}, {p2(a)}, {p2(st)} op_sel:[0,1] op_sel_hi:[1,1]")
        A(f"v_cvt_pk_bf16_f32 v{a}, v{a}, v{a+1}")
        unpack(a, a)
        if y is not None:
            A(f"v_pk_add_f32 {p2(a)}, {p2(a)}, {p2(y)}")
            A(f"v_cvt_pk_bf16_f32 v{a}, v{a}, v{a+1}")
            unpack(a, a)
        A(f"v_pk_mul_f32 {p2(b)}, {p2(a)}, {p2(CST)} op_sel_hi:[1,0]")
        A(f"v_exp_f32 v{b}, v{b}")
        A(f"v_exp_f32 v{b+1}, v{b+1}")
        A(f"v_pk_add_f32 {p2(b)}, {p2(b)}, {p2(CST)} op_sel:[0,1] op_sel_hi:[1,1]")
        A(f"v_rcp_f32 v{b}, v{b}")
        A(f"v_rcp_f32 v{b+1}, v{b+1}")
        A(f"v_pk_mul_f32 {p2(gd)}, {p2(a)}, {p2(b)}")
        A(f"v_cvt_pk_bf16_f32 v{gd}, v{gd}, v{gd+1}")
        unpack(gd, gd)
    A.label("outp_kernel")
    A(f"""
    s_cmp_ge_u32 s2, 256
    s_cbranch_scc1 K3_END
    """)
    ts_mark(A, 0)
    A(f"""
    s_load_dwordx2 s[4:5], s[0:1], 0
    s_load_dwordx2 s[8:9], s[0:1], 32
    s_load_dwordx2 s[12:13], s[0:1], 80
    s_load_dwordx2 s[20:21], s[0:1], 96
    v_lshrrev_b32 v1, 6, v0
    v_and_b32 v{lane}, 63, v0
    v_readfirstlane_b32 s26, v1
    s_and_b32 s3, s2, 7
    s_lshr_b32 s27, s2, 3
    s_and_b32 s25, s27, 7
    s_lshr_b32 s27, s27, 3
    s_lshl_b32 s24, s3, 2
    s_add_u32 s24, s24, s27
    v_lshrrev_b32 v{g}, 4, v{lane}
    v_and_b32 v{l15}, 15, v{lane}
    s_mul_i32 s42, s25, 160
    v_mul_u32_u24 v{VX}, 1280, v{l15}
    v_lshl_add_u32 v{vxo}, v{g}, 3, v{VX}
    v_lshl_add_u32 v{VX}, v{g}, 4, v{VX}
    v_lshlrev_b32 v{vst}, 3, v{l15}
    s_mov_b32 s6, 2621440
    s_mov_b32 s7, 0x20000
    s_mov_b32 s10, 819200
    s_mov_b32 s11, 0x20000
    s_mov_b32 s14, 2621440
    s_mov_b32 s15, 0x20000
    s_mov_b32 s22, {WS_SIZE}
    s_mov_b32 s23, 0x20000
    s_mul_i32 s50, s24, 81920
    s_mul_i32 s51, s26, 20480
    s_add_u32 s50, s50, s51
    s_add_u32 s53, s50, s42
    s_add_u32 s50, s50, {WS_O}
    s_mul_i32 s51, s26, 40960
    s_mul_i32 s52, s26, 5120
    s_lshl_b32 s43, s24, 9
    s_lshl_b32 s56, s26, 7
    s_add_u32 s43, s43, s56
    s_add_u32 s43, s43, {WS_ST}
    """)
    dma_voffs(A, VW, lane, t0, 42)
    A(f"""
    s_mov_b32 s29, {WS_MISC}
    s_waitcnt lgkmcnt(0)
    s_load_dword s28, s[20:21], s29
    buffer_load_dwordx2 {vr(ST,2)}, v{vst}, s[20:23], s43 offen
    """)
    for i in range(5):
        A(f"buffer_load_dwordx2 {vr(XP+2*i,2)}, v{vxo}, s[4:7], s53 offen offset:{i*32}")
    def stage_loads(s):
        for k in range(4):
            ks = 4*s + k
            A(f"buffer_load_dwordx4 {ar(4*ks,4)}, v{VX}, s[20:23], s50 offen offset:{ks*64}")
        for i in range(5):
            A(f"""
            s_add_u32 m0, s52, {s*20480 + i*1024}
            s_nop 0
            buffer_load_dwordx4 v{VW+i}, s[8:11], s51 offen lds
            """)
        A(f"s_add_u32 s51, s51, {4*40960}")
    for s in range(3): stage_loads(s)
    A(f"""
    v_lshrrev_b32 v{t0}, 2, v{lane}
    v_and_b32 v{t0+1}, 3, v{lane}
    v_mul_u32_u24 v{VT}, 160, v{t0}
    v_lshl_add_u32 v{VT}, v{t0+1}, 3, v{VT}
    v_mov_b32 v{CST}, {f32(-LOG2E)}
    v_mov_b32 v{CST+1}, 1.0
    s_waitcnt lgkmcnt(0)
    s_andn2_b32 s29, 0x7ff, s28
    s_lshr_b32 s30, s29, 6
    s_cmp_eq_u32 s30, s24
    s_cselect_b32 s31, 1, 0
    s_cbranch_scc0 K3_NS1
    v_mul_u32_u24 v{t0}, 3277, v{lane}
    v_lshrrev_b32 v{t0}, 16, v{t0}
    v_mul_u32_u24 v{t0+1}, 20, v{t0}
    v_sub_u32 v{t0+1}, v{lane}, v{t0+1}
    v_min_u32 v{t0}, 2, v{t0}
    s_mul_i32 s32, s26, 3
    v_add_u32 v{t0}, s32, v{t0}
    v_mul_u32_u24 v{vy}, 320, v{t0}
    v_lshl_add_u32 v{vy}, v{t0+1}, 4, v{vy}
    v_add_u32 v{vy}, {L_Y}, v{vy}
    v_mul_u32_u24 v{t0}, 2560, v{t0}
    v_lshl_add_u32 v{t0}, v{t0+1}, 4, v{t0}
    s_lshl_b32 s32, s42, 1
    s_add_u32 s32, s32, {WS_YP}
    """)
    for i in range(18):
        A(f"""
        buffer_load_dwordx4 {vr(YL+4*i,4)}, v{t0}, s[20:23], s32 offen
        s_add_u32 s32, s32, {12*2560}
        """)
    A(f"""
    v_lshlrev_b32 v{t0}, 2, v{lane}
    v_mov_b32 v{t0+1}, 0
    s_mul_i32 s32, s29, 1280
    s_add_u32 s32, s32, s42
    s_lshl_b32 s33, s29, 3
    s_add_u32 s33, s33, {WS_ST}
    buffer_load_dword v{SP}, v{t0}, s[4:7], s32 offen
    buffer_load_dwordx2 {vr(SP+2,2)}, v{t0+1}, s[20:23], s33 offen
    """)
    A.label("K3_NS1")
    stage_loads(3)
    def vwait(n, tag):
        A(f"""
        s_cmp_lg_u32 s31, 0
        s_cbranch_scc1 K3_W{tag}
        s_waitcnt vmcnt({n})
        """)
        A.label(f"K3_W{tag}")
        A(f"s_waitcnt vmcnt({n+E})")
    vwait(36, "x")
    for i in range(10):
        unpack(XF+2*i, XP+i)
        gpair(XF+2*i, ST, G+2*i, t0 + 4*(i&1), t0 + 2 + 4*(i&1))
    def rd_tile(i, n):
        o = (n % 10) * 5120 + i * 32
        A(f"ds_read_b64_tr_b16 {vr(T+4*i,2)}, v{VT} offset:{o}")
        A(f"ds_read_b64_tr_b16 {vr(T+4*i+2,2)}, v{VT} offset:{o+2560}")
    vwait(27, "0")
    A("s_barrier")
    ts_mark(A, 1)
    stage_loads(4)
    for i in range(5): rd_tile(i, 0)
    for n in range(20):
        last = n == 19
        if n % 4 == 3 and not last:
            s = (n + 1) // 4
            if s == 1: vwait(27, "1")
            elif s == 2: vwait(18, "2")
            elif s == 3:
                A(f"""
                s_waitcnt vmcnt(9)
                s_cmp_lg_u32 s31, 0
                s_cbranch_scc0 K3_NS2
                """)
                for i in range(1, 18):
                    A(f"v_pk_add_f32 {p2(YL)}, {p2(YL)}, {p2(YL+4*i)}")
                    A(f"v_pk_add_f32 {p2(YL+2)}, {p2(YL+2)}, {p2(YL+4*i+2)}")
                A(f"""
                ds_write_b128 v{vy}, {vr(YL,4)}
                s_waitcnt lgkmcnt(0)
                """)
                A.label("K3_NS2")
            else: A("s_waitcnt vmcnt(0)")
            A("s_barrier")
            if s == 3:
                A(f"""
                s_bfe_u32 s32, s29, 0x20004
                s_cmp_eq_u32 s32, s26
                s_cselect_b32 s32, s31, 0
                s_cmp_lg_u32 s32, 0
                s_cbranch_scc0 K3_NS3
                v_lshlrev_b32 v{vy}, 3, v{lane}
                v_add_u32 v{vy}, {L_Y}, v{vy}
                """)
                for i in range(5): A(f"ds_read_b64 {p2(YL+2*i)}, v{vy} offset:{i*320}")
                A(f"""
                s_lshr_b32 s33, s28, 16
                s_bitcmp1_b32 s28, 31
                s_cselect_b32 s34, 0x8000, -1
                s_xor_b32 s33, s33, s34
                s_lshl_b32 s33, s33, 16
                v_mul_f32 v{SP+4}, s33, v{CST}
                v_exp_f32 v{SP+4}, v{SP+4}
                s_waitcnt lgkmcnt(0)
                """)
                for i in range(5, 12): A(f"ds_read_b64 {p2(YL+2*i)}, v{vy} offset:{i*320}")
                A(f"""
                v_add_f32 v{SP+4}, 1.0, v{SP+4}
                v_rcp_f32 v{SP+4}, v{SP+4}
                """)
                for i in range(1, 5): A(f"v_pk_add_f32 {p2(YL)}, {p2(YL)}, {p2(YL+2*i)}")
                rbf(A, SP+4, SP+4)
                unpack(SP+6, SP)
                A("s_waitcnt lgkmcnt(0)")
                for i in range(5, 12): A(f"v_pk_add_f32 {p2(YL)}, {p2(YL)}, {p2(YL+2*i)}")
                A(f"v_cvt_pk_bf16_f32 v{YL}, v{YL}, v{YL+1}")
                unpack(YL, YL)
                A(f"v_pk_mul_f32 {p2(YL)}, {p2(YL)}, {p2(SP+4)} op_sel_hi:[1,0]")
                A(f"v_cvt_pk_bf16_f32 v{YL}, v{YL}, v{YL+1}")
                unpack(YL, YL)
                gpair(SP+6, SP+2, SP+8, SP+10, SP+12, y=YL)
                A(f"""
                ds_write_b64 v{vy}, {p2(SP+8)} offset:{L_G2-L_Y}
                v_lshlrev_b32 v{vy}, 4, v{g}
                v_add_u32 v{vy}, {L_G2}, v{vy}
                s_and_b32 s33, s29, 15
                v_cmp_eq_u32 vcc, s33, v{l15}
                s_waitcnt lgkmcnt(0)
                """)
                for i in range(5): A(f"ds_read_b128 {vr(YL+4*i,4)}, v{vy} offset:{i*64}")
                A("s_waitcnt lgkmcnt(0)")
                for r in range(20): A(f"v_cndmask_b32 v{G+r}, v{G+r}, v{YL+r}, vcc")
                A.label("K3_NS3")
        if n == 9: A(f"v_add_u32 v{VT}, 51200, v{VT}")
        cnt = 8
        for i in range(5):
            A(f"s_waitcnt lgkmcnt({cnt})")
            A(f"v_mfma_f32_16x16x32_bf16 {vr(ACC+4*i,4)}, {vr(T+4*i,4)}, {ar(4*n,4)}, {'0' if n == 0 else vr(ACC+4*i,4)}")
            if not last: rd_tile(i, n+1)
            else: cnt -= 2
    ts_mark(A, 2)
    for i in range(5):
        for h in range(2):
            a = ACC + 4*i + 2*h; j = 2*i + h
            A(f"v_cvt_pk_bf16_f32 v{a}, v{a}, v{a+1}")
            unpack(a, a)
            A(f"v_pk_mul_f32 {p2(a)}, {p2(a)}, {p2(G+2*j)}")
            A(f"v_cvt_pk_bf16_f32 v{a}, v{a}, v{a+1}")
            unpack(a, a)
            A(f"v_pk_add_f32 {p2(a)}, {p2(a)}, {p2(XF+2*j)}")
            A(f"v_cvt_pk_bf16_f32 v{XP+j}, v{a}, v{a+1}")
        A(f"buffer_store_dwordx2 {vr(XP+2*i,2)}, v{vxo}, s[12:15], s53 offen offset:{i*32}")
    ts_end(A, 20, 2)
    A.label("K3_END")
    A("s_endpgm")
    return A, LDS, (NV, NA)
```

```python
from asmlib import Asm
from commonf import *
import math
LOG2E = math.log2(math.e)
TIMEOUT = 1 << 17
PSLEEP = int(os.environ.get('PSLEEP', '0'))
GTS = int(os.environ.get('GTS', '0'))
PTS = int(os.environ.get('PTS', '0'))

L_W = 0
L_RING = 102400; SLOT = 8 * TB
L_E = L_RING
L_STG = L_RING + 25600
L_REC = L_STG + 2 * TB
L_M = L_RING + 2 * SLOT
L_ASI = L_M
L_FLG = L_M + 6400
L_CSE = L_FLG + 64
L_CSW = L_CSE + 384
L_P = L_CSW + 960
L_Y = L_P + 2048
L_G2 = L_Y + 3840
LDS = L_G2 + 256

def rbf(A, dst, src):
    A(f"v_cvt_pk_bf16_f32 v{dst}, v{src}, v{src}")
    A(f"v_lshlrev_b32 v{dst}, 16, v{dst}")

def dma_pat(A, pats, lane, t0, s_col):
    q, rho, c, g1, g2, r3, u = range(t0, t0 + 7)
    for i in range(5):
        A(f"""
        v_add_u32 v{q}, {64*i}, v{lane}
        v_mul_u32_u24 v{rho}, 6554, v{q}
        v_lshrrev_b32 v{rho}, 16, v{rho}
        v_mul_u32_u24 v{c}, 10, v{rho}
        v_sub_u32 v{c}, v{q}, v{c}
        v_lshlrev_b32 v{c}, 4, v{c}
        v_add_u32 v{c}, s{s_col}, v{c}
        v_bfe_u32 v{g1}, v{rho}, 2, 1
        v_bfe_u32 v{g2}, v{rho}, 3, 1
        v_and_b32 v{r3}, 3, v{rho}
        v_lshrrev_b32 v{rho}, 4, v{rho}
        """)
        for VW, a, b, c4, k0 in pats:
            A(f"""
            v_mad_u32_u24 v{u}, v{g1}, {a}, v{r3}
            v_mov_b32 v{q}, {b}
            v_mad_u32_u24 v{u}, v{g2}, v{q}, v{u}
            v_mad_u32_u24 v{u}, v{rho}, {c4}, v{u}
            v_add_u32 v{u}, {k0}, v{u}
            v_mul_u32_u24 v{u}, 1280, v{u}
            v_add_u32 v{VW+i}, v{u}, v{c}
            """)

def gen_kf(label):
    A = Asm()
    lane, g, l15 = 2, 3, 4
    def mf16(d, a, b, first):
        A(f"v_mfma_f32_16x16x32_bf16 {vr(d,4)}, {vr(a,4)}, {vr(b,4)}, {'0' if first else vr(d,4)}")
    def mf(d, a, b, c=None):
        A(f"v_mfma_f32_32x32x16_bf16 {vr(d,16)}, {vr(a,4)}, {vr(b,4)}, {'0' if c is None else vr(c,16)}")
    def unpack(d, s):
        A(f"v_and_b32 v{d+1}, 0xffff0000, v{s}")
        A(f"v_lshlrev_b32 v{d}, 16, v{s}")
    def gpair(CST, xf, st, gd, a, b, y=None):
        A(f"v_pk_add_f32 {p2(a)}, {p2(xf)}, {p2(st)} op_sel_hi:[1,0] neg_lo:[0,1] neg_hi:[0,1]")
        A(f"v_cvt_pk_bf16_f32 v{a}, v{a}, v{a+1}")
        unpack(a, a)
        A(f"v_pk_mul_f32 {p2(a)}, {p2(a)}, {p2(st)} op_sel:[0,1] op_sel_hi:[1,1]")
        A(f"v_cvt_pk_bf16_f32 v{a}, v{a}, v{a+1}")
        unpack(a, a)
        if y is not None:
            A(f"v_pk_add_f32 {p2(a)}, {p2(a)}, {p2(y)}")
            A(f"v_cvt_pk_bf16_f32 v{a}, v{a}, v{a+1}")
            unpack(a, a)
        A(f"v_pk_mul_f32 {p2(b)}, {p2(a)}, {p2(CST)} op_sel_hi:[1,0]")
        A(f"v_exp_f32 v{b}, v{b}")
        A(f"v_exp_f32 v{b+1}, v{b+1}")
        A(f"v_pk_add_f32 {p2(b)}, {p2(b)}, {p2(CST)} op_sel:[0,1] op_sel_hi:[1,1]")
        A(f"v_rcp_f32 v{b}, v{b}")
        A(f"v_rcp_f32 v{b+1}, v{b+1}")
        A(f"v_pk_mul_f32 {p2(a)}, {p2(a)}, {p2(b)}")
        A(f"v_cvt_pk_bf16_f32 v{gd}, v{a}, v{a+1}")
    def e_addrs(VE, VH, VHS, t):
        A(f"""
        v_bfe_u32 v{t}, v{lane}, 2, 2
        v_and_b32 v{t+1}, 3, v{lane}
        v_lshl_add_u32 v{t+2}, v{g}, 3, v{t}
        v_mul_u32_u24 v{t+2}, 40, v{t+2}
        v_add_u32 v{t+2}, {L_E}, v{t+2}
        v_lshl_add_u32 v{VE}, v{t+1}, 3, v{t+2}
        v_add_u32 v{t+2}, 32, v{t+2}
        v_lshl_add_u32 v{t}, v{g}, 2, v{t}
        v_lshlrev_b32 v{t}, 3, v{t}
        v_add_u32 v{t}, {L_ASI}, v{t}
        v_cmp_eq_u32 vcc, 0, v{t+1}
        v_cndmask_b32 v{VH}, v{t}, v{t+2}, vcc
        v_mov_b32 v{t}, 320
        v_mov_b32 v{t+2}, 1280
        v_cndmask_b32 v{VHS}, v{t}, v{t+2}, vcc
        """)
    def t_addrs(VTa, VTb, t):
        A(f"""
        v_lshrrev_b32 v{t}, 2, v{lane}
        v_mul_u32_u24 v{t}, 160, v{t}
        v_and_b32 v{t+1}, 1, v{lane}
        v_bfe_u32 v{t+2}, v{lane}, 1, 1
        v_mad_u32_u24 v{VTa}, v{t+1}, 40, v{t}
        v_lshl_add_u32 v{VTa}, v{t+2}, 4, v{VTa}
        v_and_b32 v{t+1}, 3, v{lane}
        v_mad_u32_u24 v{VTb}, v{t+1}, 40, v{t}
        v_add_u32 v{VTb}, 32, v{VTb}
        """)
    A.label(label)
    A(f"""
    s_cmp_ge_u32 s2, 256
    s_cbranch_scc1 KF_END
    """)
    ts_mark(A, 0)
    A(f"""
    s_load_dwordx16 s[48:63], s[0:1], 0
    s_load_dwordx8 s[64:71], s[0:1], 64
    s_load_dwordx2 s[72:73], s[0:1], 96
    s_getpc_b64 s[74:75]
    """)
    A.label("KF_PC")
    A(f"""
    v_lshrrev_b32 v1, 6, v0
    v_lshlrev_b32 v5, 7, v0
    v_min_u32 v5, CODE_END-KF_PC-4, v5
    global_load_dword v6, v5, s[74:75]
    v_and_b32 v{lane}, 63, v0
    v_readfirstlane_b32 s3, v1
    s_and_b32 s36, s2, 7
    s_lshr_b32 s37, s2, 3
    s_and_b32 s33, s37, 7
    s_lshr_b32 s38, s37, 3
    s_lshl_b32 s32, s36, 2
    s_add_u32 s32, s32, s38
    s_mul_i32 s35, s33, 160
    v_lshrrev_b32 v{g}, 4, v{lane}
    v_and_b32 v{l15}, 15, v{lane}
    s_mov_b32 s6, 2621440
    s_mov_b32 s7, 0x20000
    s_mov_b32 s10, {WS_SIZE}
    s_mov_b32 s11, 0x20000
    s_mov_b32 s15, 0x20000
    s_mov_b32 s18, 819200
    s_mov_b32 s19, 0x20000
    s_mov_b32 s23, 0x20000
    s_and_b32 s34, s3, 3
    s_cmp_ge_u32 s3, 4
    s_cbranch_scc1 KF_HELP
    """)
    VX, vxo, VE, VH, VHS, VTa, VTb = 7, 8, 9, 10, 11, 12, 13
    ES = 16; T = 16; ACC = 36; AE = 56; AH = 60; D2 = 64
    mean, mbf, rden, var, rc = 68, 148, 149, 72, 73
    t0 = 74; CQ = 76
    QA0, QA1, QB0, QB1 = 96, 100, 104, 108
    CE, CH, mONE = 136, 140, 144
    XP = 152; G = 162; X = 172
    A(f"""
    v_mul_u32_u24 v{VX}, 1280, v{l15}
    v_lshl_add_u32 v{vxo}, v{g}, 3, v{VX}
    v_lshl_add_u32 v{VX}, v{g}, 4, v{VX}
    s_mul_i32 s40, s32, 81920
    s_mul_i32 s41, s34, 20480
    s_add_u32 s40, s40, s41
    s_add_u32 s41, s40, s35
    s_mov_b32 s14, 2621440
    s_waitcnt lgkmcnt(0)
    s_mov_b64 s[4:5], s[48:49]
    s_mov_b64 s[8:9], s[72:73]
    s_mov_b64 s[12:13], s[68:69]
    """)
    if PTS: A("s_memrealtime s[90:91]")
    for n in range(20):
        A(f"buffer_load_dwordx4 {vr(X+4*n,4)}, v{VX}, s[4:7], s40 offen offset:{n*64}")
    for i in range(5):
        A(f"buffer_load_dwordx2 {vr(XP+2*i,2)}, v{vxo}, s[4:7], s41 offen offset:{i*32}")
    if PTS: A("s_memrealtime s[92:93]")
    e_addrs(VE, VH, VHS, t0)
    t_addrs(VTa, VTb, t0)
    if PTS: A("s_waitcnt vmcnt(24)\ns_memrealtime s[86:87]\ns_waitcnt vmcnt(5)\ns_memrealtime s[88:89]")
    for j in range(4): A(f"v_mov_b32 v{D2+j}, 0")
    A(f"""
    v_mov_b32 v{mONE}, 0x3f803f80
    v_mov_b32 v{mONE+1}, 0x3f803f80
    v_mov_b32 v{mONE+2}, 0x3f803f80
    v_mov_b32 v{mONE+3}, 0x3f803f80
    s_lshl_b32 s42, s34, 2
    s_add_u32 s42, s42, {L_FLG+16}
    v_mov_b32 v14, s42
    v_mov_b32 v15, {L_FLG}
    s_barrier
    """)
    ts_mark(A, 1)
    def rdA(n):
        s = ES + 8 * (n % 4)
        A(f"""
        ds_read_b64_tr_b16 {vr(s,2)}, v{VE} offset:{n*1280}
        ds_read_b64_tr_b16 {vr(s+2,2)}, v{VE} offset:{n*1280+160}
        ds_read_b64_tr_b16 {vr(s+4,2)}, v{VH}
        ds_read_b64_tr_b16 {vr(s+6,2)}, v{VH} offset:160
        v_add_u32 v{VH}, v{VHS}, v{VH}
        """)
    for n in range(3): rdA(n)
    for n in range(20):
        s = ES + 8 * (n % 4); xb = X + 4 * n
        A(f"s_waitcnt lgkmcnt({min(8, 4*(19-n))})")
        mf16(CH, s + 4, mONE, n == 0)
        mf16(CE, s, mONE, n == 0)
        A(f"s_waitcnt vmcnt({24-n})")
        mf16(AH, s + 4, xb, n == 0)
        mf16(AE, s, xb, n == 0)
        if n + 3 < 20: rdA(n + 3)
        for j in range(4): A(f"v_dot2_f32_bf16 v{D2+j}, v{xb+j}, v{xb+j}, v{D2+j}")
    A(f"""
    v_add_f32 v{D2}, v{D2}, v{D2+1}
    v_add_f32 v{D2+2}, v{D2+2}, v{D2+3}
    v_add_f32 v{D2}, v{D2}, v{D2+2}
    v_mov_b32 v{D2+1}, v{D2}
    v_mov_b32 v{t0}, v{AH+1}
    v_mov_b32 v{mean}, v{AH+1}
    v_permlane16_swap_b32 v{D2}, v{D2+1}
    v_permlane16_swap_b32 v{t0}, v{mean}
    v_add_f32 v{D2}, v{D2}, v{D2+1}
    v_mov_b32 v{D2+1}, v{D2}
    v_mul_f32 v{mean}, {f32(1/640)}, v{mean}
    v_permlane32_swap_b32 v{D2}, v{D2+1}
    v_add_f32 v{D2}, v{D2}, v{D2+1}
    """)
    rbf(A, mbf, mean)
    A(f"""
    v_mul_f32 v{var}, {f32(1/640)}, v{D2}
    v_fma_f32 v{var}, -v{mean}, v{mean}, v{var}
    v_max_f32 v{var}, 0, v{var}
    """)
    rbf(A, var, var)
    A(f"v_add_f32 v{var}, {f32(1e-5)}, v{var}")
    rbf(A, var, var)
    A(f"v_sqrt_f32 v{var}, v{var}")
    rbf(A, var, var)
    A(f"""
    v_rcp_f32 v{rden}, v{var}
    s_cmp_ge_u32 s33, 2
    s_cbranch_scc1 KF_NOPROD
    """)
    q0 = t0; va = t0 + 8; vb = t0 + 9
    for r in range(4): A(f"v_fma_f32 v{q0+r}, -v{mbf}, v{CE+r}, v{AE+r}")
    for r in range(4): A(f"v_fma_f32 v{q0+4+r}, -v{mbf}, v{CH+r}, v{AH+r}")
    for r in range(8): A(f"v_mul_f32 v{q0+r}, v{q0+r}, v{rden}")
    A(f"""
    v_cvt_pk_bf16_f32 v{q0}, v{q0}, v{q0+1}
    v_cvt_pk_bf16_f32 v{q0+1}, v{q0+2}, v{q0+3}
    v_cvt_pk_bf16_f32 v{q0+2}, v{q0+4}, v{q0+5}
    v_cvt_pk_bf16_f32 v{q0+3}, v{q0+6}, v{q0+7}
    s_lshr_b32 s42, s34, 1
    s_mul_i32 s42, s42, {TB}
    s_add_u32 s42, s42, {L_STG}
    s_and_b32 s43, s34, 1
    s_cmp_eq_u32 s33, 1
    s_cbranch_scc1 KF_PV
    s_lshl_b32 s44, s43, 4
    v_add_u32 v{va}, s44, v{l15}
    v_lshrrev_b32 v{vb}, 1, v{g}
    v_and_b32 v{q0+4}, 1, v{g}
    v_lshl_add_u32 v{vb}, v{vb}, 5, v{va}
    v_lshlrev_b32 v{vb}, 4, v{vb}
    v_lshl_add_u32 v{vb}, v{q0+4}, 3, v{vb}
    v_add_u32 v{vb}, s42, v{vb}
    ds_write_b64 v{vb}, {vr(q0,2)}
    v_lshlrev_b32 v{va}, 3, v{va}
    v_add_u32 v{va}, s42, v{va}
    v_lshlrev_b32 v{q0+4}, 16, v{q0+2}
    v_ashrrev_i32 v{q0+5}, 31, v{q0+4}
    v_or_b32 v{q0+5}, 0x80000000, v{q0+5}
    v_xor_b32 v{q0+4}, v{q0+4}, v{q0+5}
    v_and_b32 v{q0+4}, 0xffff0000, v{q0+4}
    s_lshl_b32 s44, s32, 6
    s_lshl_b32 s45, s34, 4
    s_add_u32 s44, s44, s45
    s_sub_u32 s44, 0xffff, s44
    v_sub_u32 v{q0+5}, s44, v{l15}
    v_or_b32 v{q0+4}, v{q0+4}, v{q0+5}
    s_lshl_b32 s44, s34, 7
    s_add_u32 s44, s44, {L_REC}
    v_lshlrev_b32 v{vb}, 3, v{l15}
    v_add_u32 v{vb}, s44, v{vb}
    """)
    for sh in (8, 4, 2, 1):
        A(f"v_max_u32_dpp v{q0+4}, v{q0+4}, v{q0+4} row_ror:{sh} row_mask:0xf bank_mask:0xf")
    A(f"""
    s_lshl_b32 s44, s34, 2
    s_add_u32 s44, s44, {L_REC+512}
    v_mov_b32 v{q0+5}, s44
    ds_write_b64 v{vb}, {vr(mbf,2)}
    s_mov_b64 exec, 0xffff
    ds_write_b64 v{va}, {vr(q0+2,2)} offset:1024
    s_mov_b64 exec, 0x10000
    ds_write_b32 v{q0+5}, v{q0+4}
    s_mov_b64 exec, -1
    s_branch KF_NOPROD
    """)
    A.label("KF_PV")
    A(f"""
    s_mul_i32 s43, s43, 672
    s_add_u32 s42, s42, s43
    v_and_b32 v{va}, 3, v{l15}
    v_lshrrev_b32 v{vb}, 3, v{l15}
    v_lshl_add_u32 v{va}, v{vb}, 2, v{va}
    v_lshlrev_b32 v{va}, 1, v{va}
    v_bfe_u32 v{vb}, v{l15}, 2, 1
    v_mul_u32_u24 v{vb}, 336, v{vb}
    v_add3_u32 v{va}, v{va}, v{vb}, s42
    v_lshl_add_u32 v{vb}, v{g}, 6, v{va}
    v_mov_b32 v{q0+4}, 0x3f80
    ds_write_b16 v{vb}, v{q0} offset:1280
    ds_write_b16_d16_hi v{vb}, v{q0} offset:1296
    ds_write_b16 v{vb}, v{q0+1} offset:1312
    ds_write_b16_d16_hi v{vb}, v{q0+1} offset:1328
    s_mov_b64 exec, 0xffff
    ds_write_b16 v{va}, v{q0+2} offset:{1280+256}
    ds_write_b16_d16_hi v{va}, v{q0+2} offset:{1296+256}
    ds_write_b16 v{va}, v{q0+3} offset:{1312+256}
    ds_write_b16_d16_hi v{va}, v{q0+3} offset:{1328+256}
    ds_write_b16 v{va}, v{q0+4} offset:{1344+256}
    s_mov_b64 exec, -1
    """)
    A.label("KF_NOPROD")
    A(f"""
    ds_write_b32 v14, v{mONE}
    v_mul_f32 v{rc}, {f32(20**-0.5 * LOG2E)}, v{rden}
    """)
    ts_mark(A, 2)
    def lds_wait(tag, off, need):
        A.label(f"KF_LW{tag}")
        A(f"""
        ds_read_b128 {vr(D2,4)}, v15 offset:{off}
        s_waitcnt lgkmcnt(0)
        v_min3_u32 v{D2}, v{D2}, v{D2+1}, v{D2+2}
        v_readfirstlane_b32 s42, v{D2}
        s_cmp_ge_u32 s42, {need}
        s_cbranch_scc0 KF_LW{tag}
        """)
    TO = [(VTa, 0), (VTa, 8), (VTa, 80), (VTa, 88), (VTb, 0)]
    def slot(j): return (16 + 4 * (j % 10)) if j % 10 < 5 else (112 + 4 * (j % 10 - 5))
    PD = 7
    chk = {0: 2, 6: 4, 12: 6, 18: 7}
    infl = [0]
    def rd_tile(j):
        n, i = divmod(j, 5)
        if i == 0 and n in chk:
            lds_wait(str(n), 0, chk[n]); infl[0] = 0
        v, o = TO[i]
        if n == 10 and i in (0, 4): A(f"v_add_u32 v{v}, 51200, v{v}")
        o += (n % 10) * 5120
        A(f"ds_read_b64_tr_b16 {vr(slot(j),2)}, v{v} offset:{o}")
        A(f"ds_read_b64_tr_b16 {vr(slot(j)+2,2)}, v{v} offset:{o+2560}")
        infl[0] += 1
    for j in range(PD): rd_tile(j)
    issued = PD
    for j in range(100):
        n, i = divmod(j, 5)
        ahead = issued - 1 - j
        if infl[0] > ahead:
            A(f"s_waitcnt lgkmcnt({2*ahead})"); infl[0] = ahead
        mf16(ACC + 4*i, slot(j), X + 4*n, n == 0)
        mf16(CQ + 4*i, slot(j), mONE, n == 0)
        if issued < 100: rd_tile(issued); issued += 1
    A(f"""
    v_mov_b32 v{QB1}, 0
    v_mov_b32 v{QB1+1}, 0
    """)
    QD = [QA0, QA0+2, QB0, QB0+2, QA1]
    for i in range(5):
        for r in range(4): A(f"v_fma_f32 v{D2+r}, -v{mbf}, v{CQ+4*i+r}, v{ACC+4*i+r}")
        for r in range(4): A(f"v_mul_f32 v{D2+r}, v{D2+r}, v{rc}")
        A(f"""
        v_cvt_pk_bf16_f32 v{QD[i]}, v{D2}, v{D2+1}
        v_cvt_pk_bf16_f32 v{QD[i]+1}, v{D2+2}, v{D2+3}
        """)
    A(f"""
    v_permlane32_swap_b32 v{QA1}, v{QB1}
    v_permlane32_swap_b32 v{QA1+1}, v{QB1+1}
    """)
    SA, SB, OA, OB, PA, PB = 16, 32, 48, 64, 80, 88
    KB = [112, 120]; VB = [128, 136]
    vK0, vK1, vV = 144, 145, 146
    head, hh = 5, 6
    A(f"""
    v_and_b32 v{head}, 31, v{lane}
    v_lshrrev_b32 v{hh}, 5, v{lane}
    v_lshlrev_b32 v{vK0}, 4, v{lane}
    v_add_u32 v{vK0}, {L_RING}, v{vK0}
    v_lshlrev_b32 v{vK1}, 3, v{head}
    v_add_u32 v{vK1}, {L_RING+1024}, v{vK1}
    v_min_u32 v{vV}, 20, v{head}
    v_lshlrev_b32 v{vV}, 4, v{vV}
    v_mul_u32_u24 v7, 336, v{hh}
    v_add_u32 v7, {L_RING+1280}, v7
    v_add_u32 v{vV}, v{vV}, v7
    v_cmp_eq_u32 vcc, 0, v{hh}
    v_mov_b32 v7, 0x3f80
    v_cndmask_b32 v{KB[0]+6}, 0, v7, vcc
    v_cndmask_b32 v{KB[1]+6}, 0, v7, vcc
    """)
    for r in (KB[0]+7, KB[1]+7, QA1+2, QA1+3, QB1+2, QB1+3): A(f"v_mov_b32 v{r}, 0")
    for r in range(32): A(f"v_mov_b32 v{OA+r}, 0")
    for r in range(8): A(f"v_mov_b32 v{PB+r}, 0")
    for r in range(8): A(f"v_mov_b32 v{VB[1]+r}, 0")
    if not PTS: ts_mark(A, 3)
    A("s_barrier")
    if not PTS: ts_mark(A, 4)
    A(f"""
    ds_read_b128 {vr(KB[0],4)}, v{vK0}
    ds_read_b64 {vr(KB[0]+4,2)}, v{vK1}
    ds_read_b128 {vr(VB[0],4)}, v{vV}
    ds_read_b128 {vr(VB[0]+4,4)}, v{vV} offset:672
    s_mov_b32 s24, 0
    s_waitcnt lgkmcnt(2)
    """)
    mf(SA, KB[0], QA0); mf(SA, KB[0]+4, QA1, SA)
    mf(SB, KB[0], QB0); mf(SB, KB[0]+4, QB1, SB)
    def vmax16(t, S, init=None):
        if init is None:
            A(f"v_max3_f32 v{t}, v{S}, v{S+1}, v{S+2}")
            for r in range(3, 15, 2): A(f"v_max3_f32 v{t}, v{t}, v{S+r}, v{S+r+1}")
            A(f"v_max_f32 v{t}, v{t}, v{S+15}")
        else:
            for r in range(0, 16, 2): A(f"v_max3_f32 v{t}, v{t}, v{S+r}, v{S+r+1}")
    def swapmax(t, t2):
        A(f"""
        v_mov_b32 v{t2}, v{t}
        v_permlane32_swap_b32 v{t}, v{t2}
        v_max_f32 v{t}, v{t}, v{t2}
        """)
    vmax16(12, SA); swapmax(12, 13)
    A(f"v_cvt_pk_bf16_f32 v{QA1+2}, -v12, 0")
    mf(SA, KB[0], QA0); mf(SA, KB[0]+4, QA1, SA)
    vmax16(10, SB); swapmax(10, 11)
    A(f"v_cvt_pk_bf16_f32 v{QB1+2}, -v10, 0")
    A("s_waitcnt lgkmcnt(0)")
    A.label("KF_LOOP")
    def phase(S, P, mfs, reads, pre=None, tail=None):
        e = [f"v_exp_f32 v{S+r}, v{S+r}" for r in range(16)]
        c = [f"v_cvt_pk_bf16_f32 v{P+r}, v{S+2*r}, v{S+2*r+1}" for r in range(8)]
        if pre: A(pre)
        mfs[0]()
        A(reads[0])
        A(e[0]); A(reads[1])
        for x in e[1:4]: A(x)
        mfs[1]()
        for x in (e[4], e[5], c[0], e[6], c[1], e[7]): A(x)
        mfs[2]()
        for x in (e[8], e[9], c[2], e[10], c[3], e[11]): A(x)
        mfs[3]()
        for x in (e[12], e[13], c[4], e[14], c[5], c[6], e[15]): A(x)
        A(tail if tail else "s_nop 0")
        A(c[7])
    for t in range(16):
        p = t & 1; q = p ^ 1
        tn = (t + 1) % 16
        o = (tn // 8) * SLOT + (tn % 8) * TB
        pre = "s_barrier" if t % 8 == 7 else None
        phase(SA, PA,
              [lambda: mf(SB, KB[p], QB0), lambda: mf(SB, KB[p]+4, QB1, SB),
               lambda: mf(OB, VB[q], PB, OB), lambda: mf(OB, VB[q]+4, PB+4, OB)],
              [f"ds_read_b128 {vr(KB[q],4)}, v{vK0} offset:{o}",
               f"ds_read_b64 {vr(KB[q]+4,2)}, v{vK1} offset:{o}"], pre, "s_waitcnt lgkmcnt(0)")
        phase(SB, PB,
              [lambda: mf(SA, KB[q], QA0), lambda: mf(SA, KB[q]+4, QA1, SA),
               lambda: mf(OA, VB[p], PA, OA), lambda: mf(OA, VB[p]+4, PA+4, OA)],
              [f"ds_read_b128 {vr(VB[q],4)}, v{vV} offset:{o}",
               f"ds_read_b128 {vr(VB[q]+4,4)}, v{vV} offset:{o+672}"], None,
              "s_waitcnt lgkmcnt(0)" if t != 15 else "s_add_u32 s24, s24, 1")
    A(f"""
    s_cmp_lt_u32 s24, 4
    s_waitcnt lgkmcnt(0)
    s_cbranch_scc1 KF_LOOP
    ds_read_b64 v[10:11], v15 offset:32
    """)
    mf(OB, VB[1], PB, OB); mf(OB, VB[1]+4, PB+4, OB)
    if not PTS: ts_mark(A, 5)
    A(f"""
    s_mov_b32 s26, {f32(2.0**30)}
    s_mov_b32 s27, {f32(2.0**-30)}
    v_cmp_nlt_f32 s[42:43], v{OA+12}, s26
    v_cmp_ngt_f32 s[44:45], v{OA+12}, s27
    s_waitcnt lgkmcnt(0)
    v_readfirstlane_b32 s28, v10
    v_readfirstlane_b32 s29, v11
    v_cmp_nlt_f32 s[46:47], v{OB+12}, s26
    v_cmp_ngt_f32 s[76:77], v{OB+12}, s27
    s_or_b64 s[42:43], s[42:43], s[44:45]
    s_or_b64 s[46:47], s[46:47], s[76:77]
    s_or_b64 s[42:43], s[42:43], s[46:47]
    s_cbranch_scc1 KF_FB
    """)
    A.label("KF_STORE")
    PK = 136
    ACC3 = 16; T3 = 36; NS = 4; XF = 116; GF = 136; OF = X
    vL, vR, VT3, vF = 9, 10, 11, 12
    A(f"""
    v_rcp_f32 v12, v{OA+12}
    v_rcp_f32 v13, v{OB+12}
    s_lshl_b32 s42, s32, 2
    s_add_u32 s42, s42, s34
    s_mul_i32 s43, s42, 20480
    s_add_u32 s43, s43, {F_O}
    s_lshl_b32 s44, s33, 11
    s_add_u32 s44, s44, s43
    s_lshl_b32 s45, s33, 9
    s_add_u32 s45, s45, s43
    s_add_u32 s45, s45, 16384
    s_lshl_b32 s42, s42, 7
    s_add_u32 s42, s42, {F_OF}
    s_lshl_b32 s46, s33, 2
    s_add_u32 s46, s46, s42
    v_lshlrev_b32 v{vL}, 4, v{lane}
    v_lshl_add_u32 v{vR}, v{hh}, 30, v{vL}
    """)
    for O, rr, d0, d1 in ((OA, 12, PK, PK+8), (OB, 13, PK+4, PK+10)):
        for r in range(12): A(f"v_mul_f32 v{O+r}, v{O+r}, v{rr}")
        for r in range(4): A(f"v_cvt_pk_bf16_f32 v{d0+r}, v{O+2*r}, v{O+2*r+1}")
        for r in range(2): A(f"v_cvt_pk_bf16_f32 v{d1+r}, v{O+8+2*r}, v{O+9+2*r}")
    A(f"""
    v_lshrrev_b32 v{VT3}, 2, v{lane}
    v_mul_u32_u24 v{VT3}, 160, v{VT3}
    v_and_b32 v13, 3, v{lane}
    v_lshl_add_u32 v{VT3}, v13, 3, v{VT3}
    v_mov_b32 v13, 0
    v_mov_b32 v14, 1
    s_cmp_eq_u32 s28, 1
    s_cbranch_scc1 KF_FAST
    """)
    if os.environ.get('SLOWSLEEP'):
        for _ in range(20): A("s_sleep 127")
    def rd3(n):
        b = T3 + 20 * (n % NS)
        if n == 10: A(f"v_add_u32 v{VT3}, 51200, v{VT3}")
        for i in range(5):
            o = (n % 10) * 5120 + i * 32
            A(f"ds_read_b64_tr_b16 {vr(b+4*i,2)}, v{VT3} offset:{o}")
            A(f"ds_read_b64_tr_b16 {vr(b+4*i+2,2)}, v{VT3} offset:{o+2560}")
    for sc in (" sc1", ""):
        A(f"""
        buffer_store_dwordx4 {vr(PK,4)}, v{vL}, s[8:11], s44 offen{sc}
        buffer_store_dwordx4 {vr(PK+4,4)}, v{vL}, s[8:11], s44 offen offset:1024{sc}
        buffer_store_dwordx4 {vr(PK+8,4)}, v{vR}, s[8:11], s45 offen{sc}
        """)
        rd3(0)
        A(f"""
        s_waitcnt vmcnt(0)
        s_mov_b64 exec, 1
        buffer_store_dword v14, v13, s[8:11], s46 offen{sc}
        s_mov_b64 exec, -1
        """)
        if sc:
            A("s_branch KF_P3")
            A.label("KF_FAST")
    A.label("KF_P3")
    A(f"""
    v_and_b32 v{vF}, 7, v{lane}
    v_lshlrev_b32 v{vF}, 2, v{vF}
    s_mov_b32 s47, {TIMEOUT}
    buffer_load_dword v13, v{vF}, s[8:11], s42 offen sc1
    s_waitcnt lgkmcnt(5)
    """)
    rd3(1)
    for i in range(10): unpack(XF + 2*i, XP + i)
    A("s_waitcnt lgkmcnt(5)")
    rd3(2)
    CST = 16
    A(f"""
    v_mov_b32 v{CST}, {f32(-LOG2E)}
    v_mov_b32 v{CST+1}, 1.0
    """)
    for i in range(10):
        b = 18 + 4 * (i & 1)
        gpair(CST, XF + 2*i, mbf, G + i, b, b + 2)
    A(f"""
    s_lshr_b32 s44, s29, 4
    s_lshl_b32 s45, s32, 2
    s_add_u32 s45, s45, s34
    s_cmp_eq_u32 s44, s45
    s_cbranch_scc0 KF_NSP
    v_lshlrev_b32 v14, 3, v{g}
    v_add_u32 v14, {L_G2}, v14
    s_and_b32 s44, s29, 15
    v_cmp_eq_u32 vcc, s44, v{l15}
    s_waitcnt lgkmcnt(0)
    """)
    for i in range(5): A(f"ds_read_b64 {vr(GF+2*i,2)}, v14 offset:{i*32}")
    A("s_waitcnt lgkmcnt(0)")
    for i in range(10): A(f"v_cndmask_b32 v{G+i}, v{G+i}, v{GF+i}, vcc")
    A.label("KF_NSP")
    A("s_waitcnt lgkmcnt(5)")
    rd3(3)
    for i in range(10): unpack(GF + 2*i, G + i)
    A.label("KF_POLL3")
    A(f"""
    s_waitcnt vmcnt(0)
    v_cmp_ne_u32 vcc, 0, v13
    s_sub_u32 s47, s47, 1
    s_cbranch_scc1 KF_GO3
    s_cmp_eq_u64 vcc, -1
    s_cbranch_scc1 KF_GO3
    buffer_load_dword v13, v{vF}, s[8:11], s42 offen sc1
    s_branch KF_POLL3
    """)
    A.label("KF_GO3")
    if not PTS: ts_mark(A, 6)
    for n in range(20):
        if n % 4 == 0 and n: A(f"s_add_u32 s43, s43, 4096")
        A(f"buffer_load_dwordx4 {vr(OF+4*n,4)}, v{vL}, s[8:11], s43 offen offset:{(n%4)*1024}")
    for n in range(20):
        b = T3 + 20 * (n % NS)
        w = f"s_waitcnt vmcnt({19-n})"
        if n == 0: w += " lgkmcnt(0)"
        elif n + NS - 1 < 20: w += " lgkmcnt(5)"
        elif n == 17: w += " lgkmcnt(10)"
        elif n == 18: w += " lgkmcnt(0)"
        A(w)
        for i in range(5): mf16(ACC3 + 4*i, b + 4*i, OF + 4*n, n == 0)
        if n + NS < 20: rd3(n + NS)
    for i in range(5):
        for h in range(2):
            a = ACC3 + 4*i + 2*h; j = 2*i + h
            A(f"v_cvt_pk_bf16_f32 v{a}, v{a}, v{a+1}")
            unpack(a, a)
            A(f"v_pk_mul_f32 {p2(a)}, {p2(a)}, {p2(GF+2*j)}")
            A(f"v_cvt_pk_bf16_f32 v{a}, v{a}, v{a+1}")
            unpack(a, a)
            A(f"v_pk_add_f32 {p2(a)}, {p2(a)}, {p2(XF+2*j)}")
            A(f"v_cvt_pk_bf16_f32 v{T3+j}, v{a}, v{a+1}")
        A(f"buffer_store_dwordx2 {vr(T3+2*i,2)}, v{vxo}, s[12:15], s41 offen offset:{i*32}")
    ts_end(A, 8)
    A("s_endpgm")
    A.label("KF_FB")
    A(f"""
    v_mov_b32 v{QA1+2}, 0
    v_mov_b32 v{QB1+2}, 0
    v_mov_b32 v12, 0xff800000
    v_mov_b32 v10, 0xff800000
    v_subrev_u32 v{vK0}, {L_RING}, v{vK0}
    v_subrev_u32 v{vK1}, {L_RING}, v{vK1}
    v_subrev_u32 v{vV}, {L_RING}, v{vV}
    s_mov_b32 s42, {F_KV}
    """)
    A.label("KF_FB1")
    A(f"""
    buffer_load_dwordx4 {vr(KB[0],4)}, v{vK0}, s[8:11], s42 offen
    buffer_load_dwordx2 {vr(KB[0]+4,2)}, v{vK1}, s[8:11], s42 offen
    s_add_u32 s42, s42, {TB}
    s_waitcnt vmcnt(0)
    """)
    mf(SA, KB[0], QA0); mf(SA, KB[0]+4, QA1, SA)
    mf(SB, KB[0], QB0); mf(SB, KB[0]+4, QB1, SB)
    vmax16(12, SA, 1); vmax16(10, SB, 1)
    A(f"""
    s_cmp_lt_u32 s42, {F_KV + 64*TB}
    s_cbranch_scc1 KF_FB1
    """)
    swapmax(12, 13); swapmax(10, 11)
    for r in range(32): A(f"v_mov_b32 v{OA+r}, 0")
    A(f"s_mov_b32 s42, {F_KV}")
    A.label("KF_FB2")
    A(f"""
    buffer_load_dwordx4 {vr(KB[0],4)}, v{vK0}, s[8:11], s42 offen
    buffer_load_dwordx2 {vr(KB[0]+4,2)}, v{vK1}, s[8:11], s42 offen
    buffer_load_dwordx4 {vr(VB[0],4)}, v{vV}, s[8:11], s42 offen
    buffer_load_dwordx4 {vr(VB[0]+4,4)}, v{vV}, s[8:11], s42 offen offset:672
    s_add_u32 s42, s42, {TB}
    s_waitcnt vmcnt(0)
    """)
    mf(SA, KB[0], QA0); mf(SA, KB[0]+4, QA1, SA)
    mf(SB, KB[0], QB0); mf(SB, KB[0]+4, QB1, SB)
    for S, P, m, O in ((SA, PA, 12, OA), (SB, PB, 10, OB)):
        for r in range(16): A(f"v_sub_f32 v{S+r}, v{S+r}, v{m}")
        for r in range(16): A(f"v_exp_f32 v{S+r}, v{S+r}")
        for r in range(8): A(f"v_cvt_pk_bf16_f32 v{P+r}, v{S+2*r}, v{S+2*r+1}")
        mf(O, VB[0], P, O); mf(O, VB[0]+4, P+4, O)
    A(f"""
    s_cmp_lt_u32 s42, {F_KV + 64*TB}
    s_cbranch_scc1 KF_FB2
    s_branch KF_STORE
    """)
    VW = 16
    hF = 12
    ht = 68
    vL16, vL4 = 98, 99
    WRr = 16; SG = 24
    A.label("KF_HELP")
    A(f"""
    v_lshlrev_b32 v{vL16}, 4, v{lane}
    v_lshlrev_b32 v{vL4}, 2, v{lane}
    s_mov_b32 s22, 25600
    s_mov_b32 s26, 256
    s_mov_b32 s27, 0x20000
    s_mov_b32 s30, 1280
    s_mov_b32 s31, 0x20000
    s_lshl_b32 s40, s34, 10
    s_bitcmp1_b32 s33, 0
    s_waitcnt lgkmcnt(0)
    s_cselect_b64 s[20:21], s[54:55], s[52:53]
    s_mov_b64 s[28:29], s[60:61]
    s_mov_b64 s[24:25], s[70:71]
    s_mov_b64 s[16:17], s[50:51]
    s_mov_b64 s[8:9], s[72:73]
    s_mov_b64 s[4:5], s[48:49]
    """)
    if PTS: A("s_memrealtime s[90:91]")
    A(f"""
    s_cmp_lg_u32 s34, 3
    s_cbranch_scc1 KF_HE
    """)
    for i in range(5): A(f"buffer_load_dword v{WRr+i}, v{vL4}, s[28:31], 0 offen offset:{i*256}")
    A.label("KF_HE")
    A(f"""
    s_cmp_ge_u32 s33, 2
    s_cbranch_scc1 KF_HNE
    """)
    for i in range(7):
        A(f"""
        s_add_u32 m0, s40, {L_E + i*4096}
        s_add_u32 s41, s40, {i*4096}
        buffer_load_dwordx4 v{vL16}, s[20:23], s41 offen lds
        """)
    A.label("KF_HNE")
    if PTS: A("s_memrealtime s[92:93]")
    A(f"""
    s_cmp_eq_u32 s34, 3
    s_cbranch_scc1 KF_H3
    """)
    dma_pat(A, [(VW, 8, 16, 4, 0)], lane, ht, 35)
    A(f"""
    s_mul_i32 s40, s34, 40960
    s_mul_i32 s41, s34, 5120
    s_lshl_b32 s42, s34, 2
    s_add_u32 s42, s42, {L_FLG}
    v_mov_b32 v{hF}, s42
    s_waitcnt vmcnt(0)
    s_barrier
    """)
    for i in range(7):
        if i == 6:
            A(f"""
            s_min_u32 s40, s40, {19*40960}
            s_min_u32 s41, s41, {19*5120}
            """)
        for j in range(5):
            A(f"""
            s_add_u32 m0, s41, {j*1024}
            s_nop 0
            buffer_load_dwordx4 v{VW+j}, s[16:19], s40 offen lds
            """)
        A(f"""
        s_add_u32 s40, s40, {3*40960}
        s_add_u32 s41, s41, {3*5120}
        """)
    ts_mark(A, 1)
    for i in (1, 3, 5, 6):
        A(f"""
        v_mov_b32 v{ht}, {i+1}
        s_waitcnt vmcnt({5*(6-i)})
        ds_write_b32 v{hF}, v{ht}
        """)
    ts_mark(A, 2)
    A("s_branch KF_HJ")
    A.label("KF_H3")
    A(f"""
    v_mov_b32 v28, 0
    v_mov_b32 v29, 0
    v_mov_b32 v30, 0
    v_mov_b32 v31, 0
    v_mov_b32 v14, {L_FLG}
    ds_write_b128 v14, v[28:31]
    ds_write_b128 v14, v[28:31] offset:16
    v_lshrrev_b32 v7, 4, v{lane}
    v_mul_u32_u24 v7, 320, v7
    v_bfe_u32 v8, v{lane}, 1, 1
    v_mul_u32_u24 v8, 160, v8
    v_add_u32 v7, v8, v7
    v_bfe_u32 v8, v{lane}, 2, 2
    v_lshl_add_u32 v7, v8, 5, v7
    v_and_b32 v8, 1, v{lane}
    v_lshl_add_u32 v7, v8, 4, v7
    v_add_u32 v7, {L_ASI}, v7
    v_lshlrev_b32 v40, 3, v{lane}
    s_cmp_eq_u32 s33, 0
    s_cselect_b32 s40, 0, 0x40000000
    s_cselect_b32 s41, 8, 0
    v_add_u32 v40, s40, v40
    v_cmp_gt_u32 vcc, s41, v{lane}
    v_mov_b32 v41, 0x40000000
    v_cndmask_b32 v41, v41, v{vL4}, vcc
    s_lshl_b32 s44, s32, 9
    s_add_u32 s44, s44, {F_OF}
    s_lshl_b32 s45, s32, 5
    s_add_u32 s45, s45, {F_YF}
    s_cmp_ge_u32 s33, 2
    s_cbranch_scc0 KF_H3W
    s_waitcnt vmcnt(0)
    """)
    A.label("KF_H3W")
    A("s_waitcnt vmcnt(7)")
    for i in range(5):
        b = 32 + 4 * (i % 2)
        A(f"""
        v_and_b32 v{b}, 0xffff, v{WRr+i}
        v_or_b32 v{b}, 0x3f800000, v{b}
        v_mov_b32 v{b+1}, 0
        v_lshrrev_b32 v{b+2}, 16, v{WRr+i}
        v_or_b32 v{b+2}, 0x3f800000, v{b+2}
        v_mov_b32 v{b+3}, 0
        ds_write_b128 v7, {vr(b,4)} offset:{i*1280}
        """)
    A(f"""
    s_mul_i32 s40, s33, 1280
    s_add_u32 s41, s40, {L_STG}
    v_add_u32 v7, s41, v{vL16}
    s_mul_i32 s41, s32, {2*TB}
    s_add_u32 s40, s40, s41
    s_add_u32 s40, s40, {F_KV}
    s_cmp_eq_u32 s33, 0
    s_cselect_b32 s41, 16, 20
    s_cselect_b32 s42, 33, 0
    v_mov_b32 v10, 0x40000000
    v_cmp_gt_u32 vcc, s41, v{lane}
    v_cndmask_b32 v8, v10, v{vL16}, vcc
    v_cmp_gt_u32 vcc, s42, v{lane}
    v_cndmask_b32 v9, v10, v{vL16}, vcc
    v_add_u32 v10, {L_REC}, v{vL16}
    s_mul_i32 s41, s32, 640
    s_add_u32 s41, s41, {F_REC}
    s_lshl_b32 s42, s32, 3
    s_lshl_b32 s43, s33, 2
    s_add_u32 s42, s42, s43
    v_mov_b32 v11, 1
    v_mov_b32 v12, 0
    s_mov_b32 s47, {TIMEOUT}
    s_waitcnt vmcnt(0) lgkmcnt(0)
    s_barrier
    s_cmp_ge_u32 s33, 2
    s_cbranch_scc1 KF_POLL1
    buffer_store_dwordx2 v[28:29], v40, s[8:11], s44 offen sc1
    buffer_store_dword v28, v41, s[8:11], s45 offen sc1
    """)
    A.label("KF_PUBW")
    A(f"""
    ds_read_b128 v[28:31], v14 offset:16
    s_waitcnt lgkmcnt(0)
    v_min3_u32 v28, v28, v29, v30
    v_min_u32 v28, v28, v31
    v_readfirstlane_b32 s43, v28
    s_cmp_eq_u32 s43, 0
    s_cbranch_scc1 KF_PUBW
    """)
    ts_mark(A, 1)
    A(f"""
    ds_read_b128 {vr(SG,4)}, v7
    ds_read_b128 {vr(SG+4,4)}, v7 offset:1024
    ds_read_b128 {vr(SG+8,4)}, v7 offset:{TB}
    ds_read_b128 {vr(SG+12,4)}, v7 offset:{TB+1024}
    ds_read_b128 {vr(SG+16,4)}, v10
    s_waitcnt lgkmcnt(4)
    buffer_store_dwordx4 {vr(SG,4)}, v{vL16}, s[8:11], s40 offen sc1
    s_waitcnt lgkmcnt(3)
    buffer_store_dwordx4 {vr(SG+4,4)}, v8, s[8:11], s40 offen offset:1024 sc1
    s_waitcnt lgkmcnt(2)
    buffer_store_dwordx4 {vr(SG+8,4)}, v{vL16}, s[8:11], s40 offen offset:{TB} sc1
    s_waitcnt lgkmcnt(1)
    buffer_store_dwordx4 {vr(SG+12,4)}, v8, s[8:11], s40 offen offset:{TB+1024} sc1
    s_waitcnt lgkmcnt(0)
    buffer_store_dwordx4 {vr(SG+16,4)}, v9, s[8:11], s41 offen sc1
    s_waitcnt vmcnt(0)
    s_mov_b64 exec, 1
    buffer_store_dword v11, v12, s[24:27], s42 offen sc1
    s_mov_b64 exec, -1
    """)
    ts_mark(A, 2)
    A.label("KF_POLL1")
    A(f"""
    buffer_load_dword v13, v{vL4}, s[24:27], 0 offen sc1
    s_sub_u32 s47, s47, 1
    s_cbranch_scc1 KF_GO1
    s_waitcnt vmcnt(0)
    v_cmp_ne_u32 vcc, 0, v13
    s_cmp_eq_u64 vcc, -1
    s_cbranch_scc1 KF_GO1
    """)
    if PSLEEP: A(f"s_sleep {PSLEEP}")
    A("s_branch KF_POLL1")
    A.label("KF_GO1")
    ts_mark(A, 3)
    for gi in range(2):
        A(f"""
        s_add_u32 s43, s36, {gi}
        s_and_b32 s43, s43, 7
        s_mul_i32 s43, s43, {SLOT}
        """)
        for i in range(21):
            if i % 4 == 0:
                A(f"""
                s_mov_b32 m0, {L_RING + gi*SLOT + i*1024}
                s_add_u32 s42, s43, {F_KV + i*1024}
                """)
            A(f"buffer_load_dwordx4 v{vL16}, s[8:11], s42 offen offset:{(i%4)*1024} lds")
    A("s_waitcnt vmcnt(21)")
    KEY = 4; XFh = 16; WD = 40; BF = 56; hACC = 64; ST = 68; TT = 72; Y = 84
    vL8, vGU, vX, vTR, vP = 8, 9, 11, 12, 13
    hl15, hg = 14, 15
    P1, P2 = 88, 93
    YL = 128; SP = 200; hCST = 126
    A.label("KF_HJ")
    dma_pat(A, [(P1, 20, 4, 8, 0), (P2, 20, 80, 40, 16)], lane, 100, 35)
    A(f"""
    v_lshlrev_b32 v{vL8}, 3, v{lane}
    v_lshrrev_b32 v5, 1, v{lane}
    v_mul_u32_u24 v5, 640, v5
    v_and_b32 v6, 1, v{lane}
    v_lshl_add_u32 v5, v6, 3, v5
    v_mul_u32_u24 v{vGU}, 3456, v{lane}
    v_mov_b32 v{hl15}, v{l15}
    v_mov_b32 v{hg}, v{g}
    v_lshlrev_b32 v{vX}, 4, v{g}
    s_mul_i32 s38, s36, 27
    s_add_u32 s38, s38, s37
    s_mul_i32 s39, s36, 5
    s_add_u32 s39, s39, s37
    s_add_u32 s39, s39, {216-27}
    s_cmp_lt_u32 s37, 27
    s_cselect_b32 s39, s38, s39
    s_cselect_b32 s14, {640*3456}, 0
    s_cselect_b32 s22, {1728*1280}, 0
    s_mov_b64 s[20:21], s[66:67]
    s_mov_b64 s[16:17], s[56:57]
    s_bitcmp1_b32 s34, 1
    s_cselect_b64 s[12:13], s[64:65], s[62:63]
    s_mul_i32 s46, s34, 5376
    s_mov_b32 s43, {F_REC+512}
    s_barrier
    """)
    ts_mark(A, 4)
    A(f"""
    buffer_load_dwordx2 {vr(KEY,2)}, v5, s[8:11], s43 offen
    s_lshl_b32 s26, s38, 4
    s_and_b32 s27, s34, 1
    s_mul_i32 s27, s27, {320*3456}
    s_add_u32 s26, s26, s27
    s_mul_i32 s27, s34, 5120
    """)
    for i in range(5):
        A(f"""
        s_add_u32 m0, s27, {L_W + i*1024}
        s_nop 0
        buffer_load_dwordx4 v{vGU}, s[12:15], s26 offen lds
        s_add_u32 s26, s26, {64*3456}
        """)
    A(f"""
    s_mul_i32 s26, s38, 10240
    s_mul_i32 s27, s34, 320
    s_add_u32 s26, s26, s27
    s_add_u32 s28, s26, 5120
    """)
    for f in range(8):
        A(f"buffer_load_dwordx2 {vr(WD+2*f,2)}, v{vL8}, s[20:23], s{26 if f < 4 else 28} offen offset:{(f%4)*1280}")
    def wo_block(blk0, pat):
        if pat == P1:
            A(f"""
            s_add_u32 s76, s34, {blk0}
            s_mul_i32 s77, s76, 51200
            s_mul_i32 s76, s76, 5120
            """)
        else:
            A(f"""
            s_mul_i32 s77, s34, 204800
            s_add_u32 s76, s34, {blk0}
            s_mul_i32 s76, s76, 5120
            """)
        for j in range(5):
            A(f"""
            s_add_u32 m0, s76, {j*1024}
            s_nop 0
            buffer_load_dwordx4 v{pat+j}, s[16:19], s77 offen lds
            """)
    A(f"""
    v_mov_b32 v6, 0
    s_waitcnt vmcnt(13)
    v_max_u32 v{KEY}, v{KEY}, v{KEY+1}
    """)
    for sh in (8, 4, 2, 1):
        A(f"v_max_u32_dpp v{KEY}, v{KEY}, v{KEY} row_ror:{sh} row_mask:0xf bank_mask:0xf")
    A(f"""
    v_mov_b32 v{KEY+1}, v{KEY}
    v_permlane16_swap_b32 v{KEY}, v{KEY+1}
    v_max_u32 v{KEY}, v{KEY}, v{KEY+1}
    v_mov_b32 v{KEY+1}, v{KEY}
    v_permlane32_swap_b32 v{KEY}, v{KEY+1}
    v_max_u32 v{KEY}, v{KEY}, v{KEY+1}
    v_readfirstlane_b32 s44, v{KEY}
    s_andn2_b32 s45, 0x7ff, s44
    s_mul_i32 s40, s45, 1280
    s_add_u32 s41, s40, s27
    s_lshr_b32 s42, s45, 6
    s_mul_i32 s43, s42, 640
    s_and_b32 s47, s45, 63
    s_lshl_b32 s47, s47, 3
    s_add_u32 s43, s43, s47
    s_add_u32 s43, s43, {F_REC}
    """)
    for i in range(5):
        A(f"buffer_load_dwordx4 {vr(XFh+4*i,4)}, v{vX}, s[4:7], s41 offen offset:{i*64}")
    A(f"buffer_load_dwordx2 {vr(ST,2)}, v6, s[8:11], s43 offen")
    def gts(n):
        if GTS and TS: A(f"s_memrealtime s[{80+2*n}:{81+2*n}]")
    def ring(gi):
        A(f"""
        s_add_u32 s26, s36, {gi}
        s_and_b32 s26, s26, 7
        s_mul_i32 s26, s26, {SLOT}
        s_add_u32 m0, s46, {L_RING + (gi & 1)*SLOT}
        s_add_u32 s26, s26, s46
        """)
        for r in range(4): A(f"buffer_load_dwordx4 v{vL16}, s[8:11], s26 offen offset:{r*1024} lds")
        A(f"""
        s_add_u32 m0, s46, {L_RING + (gi & 1)*SLOT + 4096}
        s_add_u32 s26, s26, 4096
        buffer_load_dwordx4 v{vL16}, s[8:11], s26 offen lds
        buffer_load_dword v{vL4}, s[8:11], s26 offen offset:1024 lds
        """)
    A(f"""
    v_bfe_u32 v{vTR}, v{lane}, 2, 2
    v_lshl_add_u32 v{vTR}, v{hg}, 3, v{vTR}
    v_lshlrev_b32 v{vTR}, 4, v{vTR}
    v_and_b32 v7, 1, v{lane}
    v_lshl_add_u32 v{vTR}, v7, 3, v{vTR}
    v_bfe_u32 v7, v{lane}, 1, 1
    v_mul_u32_u24 v7, 10240, v7
    s_mul_i32 s26, s34, 2560
    v_add3_u32 v{vTR}, v{vTR}, v7, s26
    s_lshl_b32 s26, s34, 9
    s_add_u32 s26, s26, {L_P}
    v_add_u32 v{vP}, s26, v{vL8}
    s_barrier
    """)
    gts(1)
    ring(2)
    wo_block(4, P1)
    A(f"""
    v_cmp_eq_u32 vcc, 1, v{hl15}
    v_mov_b32 v7, 0x3f803f80
    s_waitcnt vmcnt(0)
    """)
    for r in range(20): A(f"v_cndmask_b32 v{XFh+r}, v{XFh+r}, v7, vcc")
    A("s_barrier")
    gts(2)
    ring(3)
    wo_block(8, P1)
    for i in range(5):
        b = BF + 4 * (i & 1)
        A(f"""
        ds_read_b64_tr_b16 {vr(b,2)}, v{vTR} offset:{i*512}
        ds_read_b64_tr_b16 {vr(b+2,2)}, v{vTR} offset:{i*512+64}
        s_waitcnt lgkmcnt(0)
        """)
        mf16(hACC, XFh + 4*i, b, i == 0)
    A(f"""
    v_lshlrev_b32 v7, 3, v{hl15}
    v_add_u32 v7, {L_P}, v7
    ds_write_b64 v{vP}, {vr(hACC,2)}
    s_waitcnt vmcnt(0) lgkmcnt(0)
    s_barrier
    """)
    gts(3)
    ring(4)
    wo_block(0, P1)
    for i in range(4): A(f"ds_read_b64 {vr(TT+2*i,2)}, v7 offset:{i*512}")
    A(f"""
    s_mov_b32 s26, 0x05040100
    s_mov_b32 s27, 0x07060302
    s_mul_i32 s39, s39, 2560
    s_mul_i32 s28, s34, 640
    s_add_u32 s39, s39, s28
    s_add_u32 s39, s39, {F_YP}
    s_waitcnt lgkmcnt(0)
    v_add_f32 v{TT}, v{TT}, v{TT+2}
    v_add_f32 v{TT+1}, v{TT+1}, v{TT+3}
    v_add_f32 v{TT+4}, v{TT+4}, v{TT+6}
    v_add_f32 v{TT+5}, v{TT+5}, v{TT+7}
    v_add_f32 v{TT}, v{TT}, v{TT+4}
    v_add_f32 v{TT+1}, v{TT+1}, v{TT+5}
    v_fma_f32 v{TT}, -v{ST}, v{TT+1}, v{TT}
    v_mul_f32 v{TT}, v{TT}, v{ST+1}
    """)
    rbf(A, TT, TT)
    A(f"""
    v_mul_f32 v{TT+1}, {f32(-LOG2E)}, v{TT}
    v_exp_f32 v{TT+1}, v{TT+1}
    v_mov_b32_dpp v{TT+2}, v{TT} row_ror:8 row_mask:0xf bank_mask:0xf
    v_add_f32 v{TT+1}, 1.0, v{TT+1}
    v_rcp_f32 v{TT+1}, v{TT+1}
    v_mul_f32 v{TT+1}, v{TT+1}, v{TT}
    """)
    rbf(A, TT+1, TT+1)
    A(f"""
    v_mul_f32 v{TT+1}, v{TT+1}, v{TT+2}
    v_cvt_pk_bf16_f32 v{TT+1}, v{TT+1}, v{TT+1}
    """)
    for f in range(8): A(f"v_readlane_b32 s{48+f}, v{TT+1}, {f}")
    for fp in range(4): A(f"s_pack_hh_b32_b16 s{48+fp}, s{48+2*fp}, s{49+2*fp}")
    for fp in range(4):
        r0, r1 = WD + 4*fp, WD + 4*fp + 2
        for c in range(4):
            A(f"v_perm_b32 v{TT+4+c}, v{r1+(c>>1)}, v{r0+(c>>1)}, s{26+(c&1)}")
        for c in range(4):
            A(f"v_dot2_f32_bf16 v{Y+c}, v{TT+4+c}, s{48+fp}, {'0' if fp == 0 else f'v{Y+c}'}")
    A(f"""
    s_mov_b32 exec_hi, 0xff
    buffer_store_dwordx4 {vr(Y,4)}, v{vL16}, s[8:11], s39 offen sc1
    s_mov_b32 exec_hi, -1
    s_getreg_b32 s28, hwreg(HW_REG_XCC_ID)
    s_and_b32 s28, s28, 15
    s_add_u32 s28, s28, 1
    v_mov_b32 v7, s28
    s_lshl_b32 s29, s32, 5
    s_add_u32 s29, s29, {F_YF}
    s_lshl_b32 s30, s33, 2
    s_add_u32 s30, s30, s29
    s_cmp_eq_u32 s34, 0
    s_cselect_b32 s31, 0, 0x40000000
    v_mov_b32 v5, s31
    s_waitcnt vmcnt(0)
    s_barrier
    s_mov_b64 exec, 1
    buffer_store_dword v7, v5, s[8:11], s30 offen sc1
    s_mov_b64 exec, -1
    """)
    gts(5)
    ring(5)
    wo_block(12, P1)
    A(f"""
    s_cmp_eq_u32 s42, s32
    s_cselect_b32 s31, 1, 0
    s_cselect_b32 s30, {F_YF}, s29
    s_cselect_b32 s26, 63, 1
    v_and_b32 v5, s26, v{lane}
    v_lshlrev_b32 v5, 4, v5
    v_and_b32 v9, 7, v{lane}
    v_lshlrev_b32 v9, 2, v9
    s_mov_b32 s47, {TIMEOUT}
    s_waitcnt vmcnt(0)
    s_barrier
    """)
    gts(6)
    ring(6)
    wo_block(16, P2)
    A.label("KF_POLL2")
    A(f"""
    buffer_load_dwordx4 {vr(TT,4)}, v5, s[8:11], s30 offen sc1
    buffer_load_dword v{TT+4}, v9, s[8:11], s29 offen sc1
    s_sub_u32 s47, s47, 1
    s_cbranch_scc1 KF_GO2
    s_waitcnt vmcnt(0)
    v_min3_u32 v{TT}, v{TT}, v{TT+1}, v{TT+2}
    v_min3_u32 v{TT}, v{TT}, v{TT+3}, v{TT+4}
    v_cmp_ne_u32 vcc, 0, v{TT}
    s_cmp_eq_u64 vcc, -1
    s_cbranch_scc0 KF_POLL2
    """)
    A.label("KF_GO2")
    vy = 10
    A(f"""
    s_waitcnt vmcnt(0)
    v_cmp_eq_u32 vcc, s28, v{TT+4}
    s_cmp_eq_u64 vcc, -1
    s_cselect_b32 s26, 1, 0
    v_mov_b32 v{TT}, s26
    v_mov_b32 v{TT+1}, s45
    v_mov_b32 v7, {L_FLG}
    ds_write_b64 v7, {vr(TT,2)} offset:32
    s_cmp_eq_u32 s31, 0
    s_cbranch_scc1 KF_NS1
    v_mul_u32_u24 v5, 3277, v{lane}
    v_lshrrev_b32 v5, 16, v5
    v_mul_u32_u24 v7, 20, v5
    v_sub_u32 v7, v{lane}, v7
    v_min_u32 v5, 2, v5
    s_mul_i32 s26, s34, 3
    v_add_u32 v5, s26, v5
    v_mul_u32_u24 v{vy}, 320, v5
    v_lshl_add_u32 v{vy}, v7, 4, v{vy}
    v_add_u32 v{vy}, {L_Y}, v{vy}
    v_mul_u32_u24 v5, 2560, v5
    v_lshl_add_u32 v5, v7, 4, v5
    s_lshl_b32 s26, s35, 1
    s_add_u32 s26, s26, {F_YP}
    """)
    for i in range(18):
        A(f"""
        buffer_load_dwordx4 {vr(YL+4*i,4)}, v5, s[8:11], s26 offen
        s_add_u32 s26, s26, {12*2560}
        """)
    A(f"""
    s_add_u32 s26, s40, s35
    buffer_load_dword v{SP}, v{vL4}, s[4:7], s26 offen
    s_waitcnt vmcnt(1)
    """)
    for i in range(1, 18):
        A(f"v_pk_add_f32 {p2(YL)}, {p2(YL)}, {p2(YL+4*i)}")
        A(f"v_pk_add_f32 {p2(YL+2)}, {p2(YL+2)}, {p2(YL+4*i+2)}")
    A(f"ds_write_b128 v{vy}, {vr(YL,4)}")
    A.label("KF_NS1")
    A(f"""
    s_waitcnt vmcnt(0) lgkmcnt(0)
    s_barrier
    """)
    ring(7)
    A(f"""
    s_cmp_eq_u32 s34, 0
    s_cselect_b32 s31, s31, 0
    s_cmp_eq_u32 s31, 0
    s_cbranch_scc1 KF_NS2
    v_add_u32 v{vy}, {L_Y}, v{vL8}
    v_mov_b32 v{hCST}, {f32(-LOG2E)}
    v_mov_b32 v{hCST+1}, 1.0
    """)
    for i in range(12): A(f"ds_read_b64 {p2(YL+2*i)}, v{vy} offset:{i*320}")
    A(f"""
    s_lshr_b32 s26, s44, 16
    s_bitcmp1_b32 s44, 31
    s_cselect_b32 s27, 0x8000, -1
    s_xor_b32 s26, s26, s27
    s_lshl_b32 s26, s26, 16
    v_mul_f32 v{SP+4}, s26, v{hCST}
    v_exp_f32 v{SP+4}, v{SP+4}
    v_add_f32 v{SP+4}, 1.0, v{SP+4}
    v_rcp_f32 v{SP+4}, v{SP+4}
    """)
    rbf(A, SP+4, SP+4)
    unpack(SP+6, SP)
    A("s_waitcnt lgkmcnt(0)")
    for i in range(1, 12): A(f"v_pk_add_f32 {p2(YL)}, {p2(YL)}, {p2(YL+2*i)}")
    A(f"v_cvt_pk_bf16_f32 v{YL}, v{YL}, v{YL+1}")
    unpack(YL, YL)
    A(f"v_pk_mul_f32 {p2(YL)}, {p2(YL)}, {p2(SP+4)} op_sel_hi:[1,0]")
    A(f"v_cvt_pk_bf16_f32 v{YL}, v{YL}, v{YL+1}")
    unpack(YL, YL)
    gpair(hCST, SP+6, ST, SP+8, SP+10, SP+12, y=YL)
    A(f"""
    v_add_u32 v{vy}, {L_G2}, v{vL4}
    ds_write_b32 v{vy}, v{SP+8}
    """)
    A.label("KF_NS2")
    A(f"""
    s_waitcnt vmcnt(0) lgkmcnt(0)
    s_barrier
    """)
    ts_end(A, 8)
    A.label("KF_END")
    A("s_endpgm")
    return A, LDS, 256
```

```python
import sys, os
sys.path.insert(0, os.path.dirname(os.path.abspath(__file__)))
from gen import build, NAME
from kf import gen_kf
A, lds, nv = gen_kf("fused_kernel")
out = sys.argv[1] if len(sys.argv) > 1 else f"cdna_kernels/{NAME}.s"
build([("fused_kernel", A, lds, nv, 256, 512)], out)
```

```python
from asmlib import Asm
from commonf import *
import math
LOG2E = math.log2(math.e)
TIMEOUT = 1 << 17
PSLEEP = int(os.environ.get('PSLEEP', '0'))
GTS = int(os.environ.get('GTS', '0'))
PTS = int(os.environ.get('PTS', '0'))
SWE = int(os.environ.get('SWE', '0'))
GUE = int(os.environ.get('GUE', '1'))
CLK = int(os.environ.get('CLK', '0'))
GS = [int(x) for x in os.environ.get('GS', '3,5').split(',')]
IL = int(os.environ.get('IL', '4'))
WSP = int(os.environ.get('WSP', '0'))
PW = int(os.environ.get('PW', '4'))
BFL = 0
GE = int(os.environ.get('GE', '0'))
P3H = int(os.environ.get('P3H', '1'))
DRY = int(os.environ.get('DRY', '0'))
NON = int(os.environ.get('NON', '1'))
F_FL = 0x38000

L_W = 0
L_RING = 102400; SLOT = 8 * TB
L_E = L_RING
L_STG = L_RING + 25600
L_REC = L_STG + 2 * TB
L_M = L_RING + 2 * SLOT
L_ASI = L_M
L_FLG = L_M + 6400
L_CSE = L_FLG + 64
L_CSW = L_CSE + 384
L_P = L_CSW + 960
L_Y = L_P + 2048
L_G2 = L_Y + 3840
LDS = L_G2 + 256

def rbf(A, dst, src):
    A(f"v_cvt_pk_bf16_f32 v{dst}, v{src}, v{src}")
    A(f"v_lshlrev_b32 v{dst}, 16, v{dst}")

def dma_pat(A, pats, lane, t0, s_col):
    q, rho, c, g1, g2, r3, u = range(t0, t0 + 7)
    for i in range(5):
        A(f"""
        v_add_u32 v{q}, {64*i}, v{lane}
        v_mul_u32_u24 v{rho}, 6554, v{q}
        v_lshrrev_b32 v{rho}, 16, v{rho}
        v_mul_u32_u24 v{c}, 10, v{rho}
        v_sub_u32 v{c}, v{q}, v{c}
        v_lshlrev_b32 v{c}, 4, v{c}
        v_add_u32 v{c}, s{s_col}, v{c}
        v_bfe_u32 v{g1}, v{rho}, 2, 1
        v_bfe_u32 v{g2}, v{rho}, 3, 1
        v_and_b32 v{r3}, 3, v{rho}
        v_lshrrev_b32 v{rho}, 4, v{rho}
        """)
        for VW, a, b, c4, k0 in pats:
            A(f"""
            v_mad_u32_u24 v{u}, v{g1}, {a}, v{r3}
            v_mov_b32 v{q}, {b}
            v_mad_u32_u24 v{u}, v{g2}, v{q}, v{u}
            v_mad_u32_u24 v{u}, v{rho}, {c4}, v{u}
            v_add_u32 v{u}, {k0}, v{u}
            v_mul_u32_u24 v{u}, 1280, v{u}
            v_add_u32 v{VW+i}, v{u}, v{c}
            """)

def gen_kf(label):
    A = Asm()
    lane, g, l15 = 2, 3, 4
    def mf16(d, a, b, first):
        A(f"v_mfma_f32_16x16x32_bf16 {vr(d,4)}, {vr(a,4)}, {vr(b,4)}, {'0' if first else vr(d,4)}")
    def mf(d, a, b, c=None):
        A(f"v_mfma_f32_32x32x16_bf16 {vr(d,16)}, {vr(a,4)}, {vr(b,4)}, {'0' if c is None else vr(c,16)}")
    def unpack(d, s):
        A(f"v_and_b32 v{d+1}, 0xffff0000, v{s}")
        A(f"v_lshlrev_b32 v{d}, 16, v{s}")
    def gpair(CST, xf, st, gd, a, b, y=None):
        A(f"v_pk_add_f32 {p2(a)}, {p2(xf)}, {p2(st)} op_sel_hi:[1,0] neg_lo:[0,1] neg_hi:[0,1]")
        A(f"v_cvt_pk_bf16_f32 v{a}, v{a}, v{a+1}")
        unpack(a, a)
        A(f"v_pk_mul_f32 {p2(a)}, {p2(a)}, {p2(st)} op_sel:[0,1] op_sel_hi:[1,1]")
        A(f"v_cvt_pk_bf16_f32 v{a}, v{a}, v{a+1}")
        unpack(a, a)
        if y is not None:
            A(f"v_pk_add_f32 {p2(a)}, {p2(a)}, {p2(y)}")
            A(f"v_cvt_pk_bf16_f32 v{a}, v{a}, v{a+1}")
            unpack(a, a)
        A(f"v_pk_mul_f32 {p2(b)}, {p2(a)}, {p2(CST)} op_sel_hi:[1,0]")
        A(f"v_exp_f32 v{b}, v{b}")
        A(f"v_exp_f32 v{b+1}, v{b+1}")
        A(f"v_pk_add_f32 {p2(b)}, {p2(b)}, {p2(CST)} op_sel:[0,1] op_sel_hi:[1,1]")
        A(f"v_rcp_f32 v{b}, v{b}")
        A(f"v_rcp_f32 v{b+1}, v{b+1}")
        A(f"v_pk_mul_f32 {p2(a)}, {p2(a)}, {p2(b)}")
        A(f"v_cvt_pk_bf16_f32 v{gd}, v{a}, v{a+1}")
    def e_addrs(VE, VH, VHS, t):
        A(f"""
        v_bfe_u32 v{t}, v{lane}, 2, 2
        v_and_b32 v{t+1}, 3, v{lane}
        v_lshl_add_u32 v{t+2}, v{g}, 3, v{t}
        v_mul_u32_u24 v{t+2}, 40, v{t+2}
        v_add_u32 v{t+2}, {L_E}, v{t+2}
        v_lshl_add_u32 v{VE}, v{t+1}, 3, v{t+2}
        v_add_u32 v{t+2}, 32, v{t+2}
        v_lshl_add_u32 v{t}, v{g}, 2, v{t}
        v_lshlrev_b32 v{t}, 3, v{t}
        v_add_u32 v{t}, {L_ASI}, v{t}
        v_cmp_eq_u32 vcc, 0, v{t+1}
        v_cndmask_b32 v{VH}, v{t}, v{t+2}, vcc
        v_mov_b32 v{t}, 320
        v_mov_b32 v{t+2}, 1280
        v_cndmask_b32 v{VHS}, v{t}, v{t+2}, vcc
        """)
    def t_addrs(VTa, VTb, t):
        A(f"""
        v_lshrrev_b32 v{t}, 2, v{lane}
        v_mul_u32_u24 v{t}, 160, v{t}
        v_and_b32 v{t+1}, 1, v{lane}
        v_bfe_u32 v{t+2}, v{lane}, 1, 1
        v_mad_u32_u24 v{VTa}, v{t+1}, 40, v{t}
        v_lshl_add_u32 v{VTa}, v{t+2}, 4, v{VTa}
        v_and_b32 v{t+1}, 3, v{lane}
        v_mad_u32_u24 v{VTb}, v{t+1}, 40, v{t}
        v_add_u32 v{VTb}, 32, v{VTb}
        """)
    A.label(label)
    A(f"""
    s_cmp_ge_u32 s2, 256
    s_cbranch_scc1 KF_END
    """)
    ts_mark(A, 0)
    A(f"""
    s_load_dwordx16 s[48:63], s[0:1], 0
    s_load_dwordx8 s[64:71], s[0:1], 64
    s_load_dwordx2 s[72:73], s[0:1], 96
    s_getpc_b64 s[74:75]
    """)
    A.label("KF_PC")
    A(f"""
    v_lshrrev_b32 v1, 6, v0
    v_lshlrev_b32 v5, 7, v0
    v_min_u32 v5, CODE_END-KF_PC-4, v5
    global_load_dword v6, v5, s[74:75]
    v_and_b32 v{lane}, 63, v0
    v_readfirstlane_b32 s3, v1
    s_and_b32 s36, s2, 7
    s_lshr_b32 s37, s2, 3
    s_and_b32 s33, s37, 7
    s_lshr_b32 s38, s37, 3
    s_lshl_b32 s32, s36, 2
    s_add_u32 s32, s32, s38
    s_mul_i32 s35, s33, 160
    v_lshrrev_b32 v{g}, 4, v{lane}
    v_and_b32 v{l15}, 15, v{lane}
    s_mov_b32 s6, 2621440
    s_mov_b32 s7, 0x20000
    s_mov_b32 s10, {WS_SIZE}
    s_mov_b32 s11, 0x20000
    s_mov_b32 s15, 0x20000
    s_mov_b32 s18, 819200
    s_mov_b32 s19, 0x20000
    s_mov_b32 s23, 0x20000
    s_and_b32 s34, s3, 3
    s_cmp_ge_u32 s3, 4
    s_cbranch_scc1 KF_HELP
    """)
    VX, vxo, VE, VH, VHS, VTa, VTb = 7, 8, 9, 10, 11, 12, 13
    ES = 16; T = 16; ACC = 36; AE = 56; AH = 60; D2 = 64
    mean, mbf, rden, var, rc = 68, 148, 149, 72, 73
    t0 = 74; CQ = 76
    QA0, QA1, QB0, QB1 = 96, 100, 104, 108
    CE, CH, mONE = 136, 140, 144
    XP = 152; G = 162; X = 172
    A(f"""
    v_mul_u32_u24 v{VX}, 1280, v{l15}
    v_lshl_add_u32 v{vxo}, v{g}, 3, v{VX}
    v_lshl_add_u32 v{VX}, v{g}, 4, v{VX}
    s_mul_i32 s40, s32, 81920
    s_mul_i32 s41, s34, 20480
    s_add_u32 s40, s40, s41
    s_add_u32 s41, s40, s35
    s_mov_b32 s14, 2621440
    s_waitcnt lgkmcnt(0)
    s_mov_b64 s[4:5], s[48:49]
    s_mov_b64 s[8:9], s[72:73]
    s_mov_b64 s[12:13], s[68:69]
    """)
    if PTS: A("s_memrealtime s[90:91]")
    for n in range(20):
        A(f"buffer_load_dwordx4 {vr(X+4*n,4)}, v{VX}, s[4:7], s40 offen offset:{n*64}")
    for i in range(5):
        A(f"buffer_load_dwordx2 {vr(XP+2*i,2)}, v{vxo}, s[4:7], s41 offen offset:{i*32}")
    if PTS: A("s_memrealtime s[92:93]")
    e_addrs(VE, VH, VHS, t0)
    t_addrs(VTa, VTb, t0)
    if PTS: A("s_waitcnt vmcnt(24)\ns_memrealtime s[86:87]\ns_waitcnt vmcnt(5)\ns_memrealtime s[88:89]")
    for j in range(4): A(f"v_mov_b32 v{D2+j}, 0")
    A(f"""
    v_mov_b32 v{mONE}, 0x3f803f80
    v_mov_b32 v{mONE+1}, 0x3f803f80
    v_mov_b32 v{mONE+2}, 0x3f803f80
    v_mov_b32 v{mONE+3}, 0x3f803f80
    s_lshl_b32 s42, s34, 2
    s_add_u32 s42, s42, {L_FLG+16}
    v_mov_b32 v14, s42
    v_mov_b32 v15, {L_FLG}
    s_barrier
    """)
    ts_mark(A, 1)
    def rdA(n):
        s = ES + 8 * (n % 4)
        A(f"""
        ds_read_b64_tr_b16 {vr(s,2)}, v{VE} offset:{n*1280}
        ds_read_b64_tr_b16 {vr(s+2,2)}, v{VE} offset:{n*1280+160}
        ds_read_b64_tr_b16 {vr(s+4,2)}, v{VH}
        ds_read_b64_tr_b16 {vr(s+6,2)}, v{VH} offset:160
        v_add_u32 v{VH}, v{VHS}, v{VH}
        """)
    for n in range(3): rdA(n)
    for n in range(20):
        s = ES + 8 * (n % 4); xb = X + 4 * n
        A(f"s_waitcnt lgkmcnt({min(8, 4*(19-n))})")
        mf16(CH, s + 4, mONE, n == 0)
        mf16(CE, s, mONE, n == 0)
        A(f"s_waitcnt vmcnt({24-n})")
        mf16(AH, s + 4, xb, n == 0)
        mf16(AE, s, xb, n == 0)
        if n + 3 < 20: rdA(n + 3)
        for j in range(4): A(f"v_dot2_f32_bf16 v{D2+j}, v{xb+j}, v{xb+j}, v{D2+j}")
    A(f"""
    v_add_f32 v{D2}, v{D2}, v{D2+1}
    v_add_f32 v{D2+2}, v{D2+2}, v{D2+3}
    v_add_f32 v{D2}, v{D2}, v{D2+2}
    v_mov_b32 v{D2+1}, v{D2}
    v_mov_b32 v{t0}, v{AH+1}
    v_mov_b32 v{mean}, v{AH+1}
    v_permlane16_swap_b32 v{D2}, v{D2+1}
    v_permlane16_swap_b32 v{t0}, v{mean}
    v_add_f32 v{D2}, v{D2}, v{D2+1}
    v_mov_b32 v{D2+1}, v{D2}
    v_mul_f32 v{mean}, {f32(1/640)}, v{mean}
    v_permlane32_swap_b32 v{D2}, v{D2+1}
    v_add_f32 v{D2}, v{D2}, v{D2+1}
    """)
    rbf(A, mbf, mean)
    A(f"""
    v_mul_f32 v{var}, {f32(1/640)}, v{D2}
    v_fma_f32 v{var}, -v{mean}, v{mean}, v{var}
    v_max_f32 v{var}, 0, v{var}
    """)
    rbf(A, var, var)
    A(f"v_add_f32 v{var}, {f32(1e-5)}, v{var}")
    rbf(A, var, var)
    A(f"v_sqrt_f32 v{var}, v{var}")
    rbf(A, var, var)
    A(f"""
    v_rcp_f32 v{rden}, v{var}
    s_cmp_ge_u32 s33, 2
    s_cbranch_scc1 KF_NOPROD
    """)
    q0 = t0; va = t0 + 8; vb = t0 + 9
    for r in range(4): A(f"v_fma_f32 v{q0+r}, -v{mbf}, v{CE+r}, v{AE+r}")
    for r in range(4): A(f"v_fma_f32 v{q0+4+r}, -v{mbf}, v{CH+r}, v{AH+r}")
    for r in range(8): A(f"v_mul_f32 v{q0+r}, v{q0+r}, v{rden}")
    A(f"""
    v_cvt_pk_bf16_f32 v{q0}, v{q0}, v{q0+1}
    v_cvt_pk_bf16_f32 v{q0+1}, v{q0+2}, v{q0+3}
    v_cvt_pk_bf16_f32 v{q0+2}, v{q0+4}, v{q0+5}
    v_cvt_pk_bf16_f32 v{q0+3}, v{q0+6}, v{q0+7}
    s_lshr_b32 s42, s34, 1
    s_mul_i32 s42, s42, {TB}
    s_add_u32 s42, s42, {L_STG}
    s_and_b32 s43, s34, 1
    s_cmp_eq_u32 s33, 1
    s_cbranch_scc1 KF_PV
    s_lshl_b32 s44, s43, 4
    v_add_u32 v{va}, s44, v{l15}
    v_lshrrev_b32 v{vb}, 1, v{g}
    v_and_b32 v{q0+4}, 1, v{g}
    v_lshl_add_u32 v{vb}, v{vb}, 5, v{va}
    v_lshlrev_b32 v{vb}, 4, v{vb}
    v_lshl_add_u32 v{vb}, v{q0+4}, 3, v{vb}
    v_add_u32 v{vb}, s42, v{vb}
    ds_write_b64 v{vb}, {vr(q0,2)}
    v_lshlrev_b32 v{va}, 3, v{va}
    v_add_u32 v{va}, s42, v{va}
    v_lshlrev_b32 v{q0+4}, 16, v{q0+2}
    v_ashrrev_i32 v{q0+5}, 31, v{q0+4}
    v_or_b32 v{q0+5}, 0x80000000, v{q0+5}
    v_xor_b32 v{q0+4}, v{q0+4}, v{q0+5}
    v_and_b32 v{q0+4}, 0xffff0000, v{q0+4}
    s_lshl_b32 s44, s32, 6
    s_lshl_b32 s45, s34, 4
    s_add_u32 s44, s44, s45
    s_sub_u32 s44, 0xffff, s44
    v_sub_u32 v{q0+5}, s44, v{l15}
    v_or_b32 v{q0+4}, v{q0+4}, v{q0+5}
    s_lshl_b32 s44, s34, 7
    s_add_u32 s44, s44, {L_REC}
    v_lshlrev_b32 v{vb}, 3, v{l15}
    v_add_u32 v{vb}, s44, v{vb}
    """)
    for sh in (8, 4, 2, 1):
        A(f"v_max_u32_dpp v{q0+4}, v{q0+4}, v{q0+4} row_ror:{sh} row_mask:0xf bank_mask:0xf")
    A(f"""
    s_lshl_b32 s44, s34, 2
    s_add_u32 s44, s44, {L_REC+512}
    v_mov_b32 v{q0+5}, s44
    ds_write_b64 v{vb}, {vr(mbf,2)}
    s_mov_b64 exec, 0xffff
    ds_write_b64 v{va}, {vr(q0+2,2)} offset:1024
    s_mov_b64 exec, 0x10000
    ds_write_b32 v{q0+5}, v{q0+4}
    s_mov_b64 exec, -1
    s_branch KF_NOPROD
    """)
    A.label("KF_PV")
    A(f"""
    s_mul_i32 s43, s43, 672
    s_add_u32 s42, s42, s43
    v_and_b32 v{va}, 3, v{l15}
    v_lshrrev_b32 v{vb}, 3, v{l15}
    v_lshl_add_u32 v{va}, v{vb}, 2, v{va}
    v_lshlrev_b32 v{va}, 1, v{va}
    v_bfe_u32 v{vb}, v{l15}, 2, 1
    v_mul_u32_u24 v{vb}, 336, v{vb}
    v_add3_u32 v{va}, v{va}, v{vb}, s42
    v_lshl_add_u32 v{vb}, v{g}, 6, v{va}
    v_mov_b32 v{q0+4}, 0x3f80
    ds_write_b16 v{vb}, v{q0} offset:1280
    ds_write_b16_d16_hi v{vb}, v{q0} offset:1296
    ds_write_b16 v{vb}, v{q0+1} offset:1312
    ds_write_b16_d16_hi v{vb}, v{q0+1} offset:1328
    s_mov_b64 exec, 0xffff
    ds_write_b16 v{va}, v{q0+2} offset:{1280+256}
    ds_write_b16_d16_hi v{va}, v{q0+2} offset:{1296+256}
    ds_write_b16 v{va}, v{q0+3} offset:{1312+256}
    ds_write_b16_d16_hi v{va}, v{q0+3} offset:{1328+256}
    ds_write_b16 v{va}, v{q0+4} offset:{1344+256}
    s_mov_b64 exec, -1
    """)
    A.label("KF_NOPROD")
    A(f"""
    ds_write_b32 v14, v{mONE}
    v_mul_f32 v{rc}, {f32(20**-0.5 * LOG2E)}, v{rden}
    """)
    ts_mark(A, 2)
    def lds_wait(tag, off, need):
        A.label(f"KF_LW{tag}")
        A(f"""
        ds_read_b128 {vr(D2,4)}, v15 offset:{off}
        s_waitcnt lgkmcnt(0)
        v_min3_u32 v{D2}, v{D2}, v{D2+1}, v{D2+2}
        v_readfirstlane_b32 s42, v{D2}
        s_cmp_ge_u32 s42, {need}
        s_cbranch_scc0 KF_LW{tag}
        """)
    TO = [(VTa, 0), (VTa, 8), (VTa, 80), (VTa, 88), (VTb, 0)]
    def slot(j): return (16 + 4 * (j % 10)) if j % 10 < 5 else (112 + 4 * (j % 10 - 5))
    PD = 7
    chk = {0: 2, 6: 4, 12: 6, 18: 7}
    infl = [0]
    def rd_tile(j):
        n, i = divmod(j, 5)
        if i == 0 and n in chk:
            lds_wait(str(n), 0, chk[n]); infl[0] = 0
        v, o = TO[i]
        if n == 10 and i in (0, 4): A(f"v_add_u32 v{v}, 51200, v{v}")
        o += (n % 10) * 5120
        A(f"ds_read_b64_tr_b16 {vr(slot(j),2)}, v{v} offset:{o}")
        A(f"ds_read_b64_tr_b16 {vr(slot(j)+2,2)}, v{v} offset:{o+2560}")
        infl[0] += 1
    for j in range(PD): rd_tile(j)
    issued = PD
    for j in range(100):
        n, i = divmod(j, 5)
        ahead = issued - 1 - j
        if infl[0] > ahead:
            A(f"s_waitcnt lgkmcnt({2*ahead})"); infl[0] = ahead
        mf16(ACC + 4*i, slot(j), X + 4*n, n == 0)
        mf16(CQ + 4*i, slot(j), mONE, n == 0)
        if issued < 100: rd_tile(issued); issued += 1
    A(f"""
    v_mov_b32 v{QB1}, 0
    v_mov_b32 v{QB1+1}, 0
    """)
    QD = [QA0, QA0+2, QB0, QB0+2, QA1]
    for i in range(5):
        for r in range(4): A(f"v_fma_f32 v{D2+r}, -v{mbf}, v{CQ+4*i+r}, v{ACC+4*i+r}")
        for r in range(4): A(f"v_mul_f32 v{D2+r}, v{D2+r}, v{rc}")
        A(f"""
        v_cvt_pk_bf16_f32 v{QD[i]}, v{D2}, v{D2+1}
        v_cvt_pk_bf16_f32 v{QD[i]+1}, v{D2+2}, v{D2+3}
        """)
    A(f"""
    v_permlane32_swap_b32 v{QA1}, v{QB1}
    v_permlane32_swap_b32 v{QA1+1}, v{QB1+1}
    """)
    SA, SB, OA, OB, PA, PB = 16, 32, 48, 64, 80, 88
    KB = [112, 120]; VB = [128, 136]
    vK0, vK1, vV = 144, 145, 146
    head, hh = 5, 6
    A(f"""
    v_and_b32 v{head}, 31, v{lane}
    v_lshrrev_b32 v{hh}, 5, v{lane}
    v_lshlrev_b32 v{vK0}, 4, v{lane}
    v_add_u32 v{vK0}, {L_RING}, v{vK0}
    v_lshlrev_b32 v{vK1}, 3, v{head}
    v_add_u32 v{vK1}, {L_RING+1024}, v{vK1}
    v_min_u32 v{vV}, 20, v{head}
    v_lshlrev_b32 v{vV}, 4, v{vV}
    v_mul_u32_u24 v7, 336, v{hh}
    v_add_u32 v7, {L_RING+1280}, v7
    v_add_u32 v{vV}, v{vV}, v7
    v_cmp_eq_u32 vcc, 0, v{hh}
    v_mov_b32 v7, 0x3f80
    v_cndmask_b32 v{KB[0]+6}, 0, v7, vcc
    v_cndmask_b32 v{KB[1]+6}, 0, v7, vcc
    """)
    for r in (KB[0]+7, KB[1]+7, QA1+2, QA1+3, QB1+2, QB1+3): A(f"v_mov_b32 v{r}, 0")
    for r in range(32): A(f"v_mov_b32 v{OA+r}, 0")
    for r in range(8): A(f"v_mov_b32 v{PB+r}, 0")
    for r in range(8): A(f"v_mov_b32 v{VB[1]+r}, 0")
    CW, FT, QN = 172, 180, 178
    if SWE:
        co = [-0.30488321185112, 0.22764499485492706, 0.0770670473575592] if SWE == 3 else [-0.3340390622615814, 0.32993242144584656]
        A(f"""
        s_setreg_imm32_b32 hwreg(HW_REG_MODE, 4, 2), 3
        v_mov_b32 v{CW}, {f32(co[-1])}
        v_mov_b32 v{CW+1}, {f32(co[-2])}
        v_mov_b32 v{CW+2}, {f32(co[0])}
        v_mov_b32 v{CW+4}, 0x80
        v_mov_b32 v{CW+5}, 0x3f80
        """)
        for d, (a0, a1) in ((FT, (QA0, QA1)), (FT+1, (QB0, QB1))):
            for j, r in enumerate([a0, a0+1, a0+2, a0+3, a1, a1+1]):
                A(f"v_dot2_f32_bf16 v{d}, v{r}, v{r}, {'0' if j == 0 else f'v{d}'}")
        A(f"""
        v_mov_b32 v{FT+2}, v{FT}
        v_mov_b32 v{FT+3}, v{FT+1}
        v_permlane32_swap_b32 v{FT}, v{FT+2}
        v_permlane32_swap_b32 v{FT+1}, v{FT+3}
        v_add_f32 v{FT}, v{FT}, v{FT+2}
        v_add_f32 v{FT+1}, v{FT+1}, v{FT+3}
        v_max_f32 v{QN}, v{FT}, v{FT+1}
        """)
    if not PTS: ts_mark(A, 3)
    A("s_barrier")
    if not PTS: ts_mark(A, 4)
    if CLK: A("s_memtime s[82:83]\ns_waitcnt lgkmcnt(0)")
    A(f"""
    ds_read_b128 {vr(KB[0],4)}, v{vK0}
    ds_read_b64 {vr(KB[0]+4,2)}, v{vK1}
    ds_read_b128 {vr(VB[0],4)}, v{vV}
    ds_read_b128 {vr(VB[0]+4,4)}, v{vV} offset:672
    s_mov_b32 s24, 0
    s_waitcnt lgkmcnt(2)
    """)
    mf(SA, KB[0], QA0); mf(SA, KB[0]+4, QA1, SA)
    mf(SB, KB[0], QB0); mf(SB, KB[0]+4, QB1, SB)
    def vmax16(t, S, init=None):
        if init is None:
            A(f"v_max3_f32 v{t}, v{S}, v{S+1}, v{S+2}")
            for r in range(3, 15, 2): A(f"v_max3_f32 v{t}, v{t}, v{S+r}, v{S+r+1}")
            A(f"v_max_f32 v{t}, v{t}, v{S+15}")
        else:
            for r in range(0, 16, 2): A(f"v_max3_f32 v{t}, v{t}, v{S+r}, v{S+r+1}")
    def swapmax(t, t2):
        A(f"""
        v_mov_b32 v{t2}, v{t}
        v_permlane32_swap_b32 v{t}, v{t2}
        v_max_f32 v{t}, v{t}, v{t2}
        """)
    vmax16(12, SA); swapmax(12, 13)
    A(f"v_cvt_pk_bf16_f32 v{QA1+2}, -v12, 0")
    mf(SA, KB[0], QA0); mf(SA, KB[0]+4, QA1, SA)
    vmax16(10, SB); swapmax(10, 11)
    A(f"v_cvt_pk_bf16_f32 v{QB1+2}, -v10, 0")
    A("s_waitcnt lgkmcnt(0)")
    A.label("KF_LOOP")
    def phase_sw(S, P, mfs, reads, pre=None, tail=None):
        if pre: A(pre)
        L = []
        for cp in range(16 // IL // 2):
            xs = [S + 2*(IL*cp + i) for i in range(IL)]
            Fs = [FT + 2*i for i in range(IL)]; Us = [FT + 2*IL + 2*i for i in range(IL)]
            for F, x in zip(Fs, xs): L += [f"v_fract_f32 v{F}, v{x}", f"v_fract_f32 v{F+1}, v{x+1}"]
            for F, U in zip(Fs, Us):
                L.append(f"v_pk_fma_f32 {p2(U)}, {p2(F)}, {p2(CW)}, {p2(CW)} op_sel:[0,0,1] op_sel_hi:[1,0,1]")
            if SWE == 3:
                for F, U in zip(Fs, Us):
                    L.append(f"v_pk_fma_f32 {p2(U)}, {p2(U)}, {p2(F)}, {p2(CW+2)} op_sel_hi:[1,1,0]")
            for F, U, x in zip(Fs, Us, xs):
                L.append(f"v_pk_fma_f32 {p2(x)}, {p2(U)}, {p2(F)}, {p2(x)}")
            for x in xs:
                L.append(f"v_pk_fma_f32 {p2(x)}, {p2(x)}, {p2(CW+4)}, {p2(CW+4)} op_sel:[0,0,1] op_sel_hi:[1,0,1] clamp")
            for x in xs:
                L.append(f"v_lshl_or_b32 v{P+(x-S)//2}, v{x+1}, 16, v{x}")
        q4 = len(L) // 4
        for i, x in enumerate(L):
            if i % q4 == 0 and i // q4 < 4: mfs[i // q4]()
            if i == 0: A(reads[0])
            if i == 1: A(reads[1])
            if i == len(L) - 1 and tail: A(tail)
            A(x)
    def phase(S, P, mfs, reads, pre=None, tail=None):
        if SWE: return phase_sw(S, P, mfs, reads, pre, tail)
        e = [f"v_exp_f32 v{S+r}, v{S+r}" for r in range(16)]
        c = [f"v_cvt_pk_bf16_f32 v{P+r}, v{S+2*r}, v{S+2*r+1}" for r in range(8)]
        if pre: A(pre)
        mfs[0]()
        A(reads[0])
        A(e[0]); A(reads[1])
        for x in e[1:4]: A(x)
        mfs[1]()
        for x in (e[4], e[5], c[0], e[6], c[1], e[7]): A(x)
        mfs[2]()
        for x in (e[8], e[9], c[2], e[10], c[3], e[11]): A(x)
        mfs[3]()
        for x in (e[12], e[13], c[4], e[14], c[5], c[6], e[15]): A(x)
        A(tail if tail else "s_nop 0")
        A(c[7])
    for t in range(16):
        p = t & 1; q = p ^ 1
        tn = (t + 1) % 16
        o = (tn // 8) * SLOT + (tn % 8) * TB
        pre = "s_barrier" if t % 8 == 7 else None
        phase(SA, PA,
              [lambda: mf(SB, KB[p], QB0), lambda: mf(SB, KB[p]+4, QB1, SB),
               lambda: mf(OB, VB[q], PB, OB), lambda: mf(OB, VB[q]+4, PB+4, OB)],
              [f"ds_read_b128 {vr(KB[q],4)}, v{vK0} offset:{o}",
               f"ds_read_b64 {vr(KB[q]+4,2)}, v{vK1} offset:{o}"], pre, "s_waitcnt lgkmcnt(0)")
        phase(SB, PB,
              [lambda: mf(SA, KB[q], QA0), lambda: mf(SA, KB[q]+4, QA1, SA),
               lambda: mf(OA, VB[p], PA, OA), lambda: mf(OA, VB[p]+4, PA+4, OA)],
              [f"ds_read_b128 {vr(VB[q],4)}, v{vV} offset:{o}",
               f"ds_read_b128 {vr(VB[q]+4,4)}, v{vV} offset:{o+672}"], None,
              "s_waitcnt lgkmcnt(0)" if t != 15 else "s_add_u32 s24, s24, 1")
    A(f"""
    s_cmp_lt_u32 s24, 4
    s_waitcnt lgkmcnt(0)
    s_cbranch_scc1 KF_LOOP
    ds_read_b64 v[10:11], v15 offset:32
    {f'ds_read_b128 {vr(FT,4)}, v15 offset:48' if SWE else ''}
    """)
    mf(OB, VB[1], PB, OB); mf(OB, VB[1]+4, PB+4, OB)
    if not PTS: ts_mark(A, 5)
    if CLK: A("s_memtime s[84:85]\ns_waitcnt lgkmcnt(0)")
    A(f"""
    s_mov_b32 s26, {f32(2.0**30)}
    s_mov_b32 s27, {f32(2.0**-30)}
    v_cmp_nlt_f32 s[42:43], v{OA+12}, s26
    v_cmp_ngt_f32 s[44:45], v{OA+12}, s27
    s_waitcnt lgkmcnt(0)
    v_readfirstlane_b32 s28, v10
    v_readfirstlane_b32 s29, v11
    v_cmp_nlt_f32 s[46:47], v{OB+12}, s26
    v_cmp_ngt_f32 s[76:77], v{OB+12}, s27
    s_or_b64 s[42:43], s[42:43], s[44:45]
    s_or_b64 s[46:47], s[46:47], s[76:77]
    """)
    if SWE: A(f"""
    v_max3_f32 v{FT}, v{FT}, v{FT+1}, v{FT+2}
    v_max_f32 v{FT}, v{FT}, v{FT+3}
    v_mul_f32 v{FT}, v{FT}, v{QN}
    s_mov_b32 s26, {f32(3600.0)}
    v_cmp_nlt_f32 s[44:45], v{FT}, s26
    s_or_b64 s[42:43], s[42:43], s[44:45]
    """)
    A(f"""
    s_or_b64 s[42:43], s[42:43], s[46:47]
    s_cbranch_scc1 KF_FB
    """)
    A.label("KF_STORE")
    PK = 136
    ACC3 = 16; T3 = 36; NS = 4; XF = 116; GF = 136; OF = X
    vL, vR, VT3, vF = 9, 10, 11, 12
    A(f"""
    v_rcp_f32 v12, v{OA+12}
    v_rcp_f32 v13, v{OB+12}
    s_lshl_b32 s42, s32, 2
    s_add_u32 s42, s42, s34
    s_mul_i32 s43, s42, 20480
    s_add_u32 s43, s43, {F_O}
    s_lshl_b32 s44, s33, 11
    s_add_u32 s44, s44, s43
    s_lshl_b32 s45, s33, 9
    s_add_u32 s45, s45, s43
    s_add_u32 s45, s45, 16384
    s_lshl_b32 s42, s42, 7
    s_add_u32 s42, s42, {F_OF}
    s_lshl_b32 s46, s33, 2
    s_add_u32 s46, s46, s42
    v_lshlrev_b32 v{vL}, 4, v{lane}
    v_lshl_add_u32 v{vR}, v{hh}, 30, v{vL}
    """)
    for O, rr, d0, d1 in ((OA, 12, PK, PK+8), (OB, 13, PK+4, PK+10)):
        for r in range(12): A(f"v_mul_f32 v{O+r}, v{O+r}, v{rr}")
        for r in range(4): A(f"v_cvt_pk_bf16_f32 v{d0+r}, v{O+2*r}, v{O+2*r+1}")
        for r in range(2): A(f"v_cvt_pk_bf16_f32 v{d1+r}, v{O+8+2*r}, v{O+9+2*r}")
    A(f"""
    v_lshrrev_b32 v{VT3}, 2, v{lane}
    v_mul_u32_u24 v{VT3}, 160, v{VT3}
    v_and_b32 v13, 3, v{lane}
    v_lshl_add_u32 v{VT3}, v13, 3, v{VT3}
    v_mov_b32 v13, 0
    v_mov_b32 v14, 1
    s_cmp_eq_u32 s28, 1
    s_cbranch_scc1 KF_FAST
    """)
    if os.environ.get('SLOWSLEEP'):
        for _ in range(20): A("s_sleep 127")
    def rd3(n):
        if P3H: return
        b = T3 + 20 * (n % NS)
        if n == 10: A(f"v_add_u32 v{VT3}, 51200, v{VT3}")
        for i in range(5):
            o = (n % 10) * 5120 + i * 32
            A(f"ds_read_b64_tr_b16 {vr(b+4*i,2)}, v{VT3} offset:{o}")
            A(f"ds_read_b64_tr_b16 {vr(b+4*i+2,2)}, v{VT3} offset:{o+2560}")
    for sc in (" sc1", ""):
        A(f"""
        buffer_store_dwordx4 {vr(PK,4)}, v{vL}, s[8:11], s44 offen{sc}
        buffer_store_dwordx4 {vr(PK+4,4)}, v{vL}, s[8:11], s44 offen offset:1024{sc}
        buffer_store_dwordx4 {vr(PK+8,4)}, v{vR}, s[8:11], s45 offen{sc}
        """)
        rd3(0)
        A(f"""
        s_waitcnt vmcnt(0)
        s_mov_b64 exec, 1
        buffer_store_dword v14, v13, s[8:11], s46 offen{sc}
        s_mov_b64 exec, -1
        """)
        if sc:
            A("s_branch KF_P3")
            A.label("KF_FAST")
    A.label("KF_P3")
    A(f"""
    v_and_b32 v{vF}, 7, v{lane}
    v_lshlrev_b32 v{vF}, 2, v{vF}
    s_mov_b32 s47, {TIMEOUT}
    {'' if P3H else f'buffer_load_dword v13, v{vF}, s[8:11], s42 offen sc1'}
    s_waitcnt lgkmcnt(5)
    """)
    rd3(1)
    for i in range(10): unpack(XF + 2*i, XP + i)
    A("s_waitcnt lgkmcnt(5)")
    rd3(2)
    CST = 16
    A(f"""
    v_mov_b32 v{CST}, {f32(-LOG2E)}
    v_mov_b32 v{CST+1}, 1.0
    """)
    for i in range(10):
        b = 18 + 4 * (i & 1)
        gpair(CST, XF + 2*i, mbf, G + i, b, b + 2)
    A(f"""
    s_lshr_b32 s44, s29, 4
    s_lshl_b32 s45, s32, 2
    s_add_u32 s45, s45, s34
    s_cmp_eq_u32 s44, s45
    s_cbranch_scc0 KF_NSP
    v_lshlrev_b32 v14, 3, v{g}
    v_add_u32 v14, {L_G2}, v14
    s_and_b32 s44, s29, 15
    v_cmp_eq_u32 vcc, s44, v{l15}
    s_waitcnt lgkmcnt(0)
    """)
    for i in range(5): A(f"ds_read_b64 {vr(GF+2*i,2)}, v14 offset:{i*32}")
    A("s_waitcnt lgkmcnt(0)")
    for i in range(10): A(f"v_cndmask_b32 v{G+i}, v{G+i}, v{GF+i}, vcc")
    A.label("KF_NSP")
    A("s_waitcnt lgkmcnt(5)")
    rd3(3)
    for i in range(10): unpack(GF + 2*i, G + i)
    if P3H:
        A(f"""
        s_mul_i32 s44, s34, 5120
        v_add_u32 v{vR}, s44, v{vL}
        v_add_u32 v{VT3}, 40960, v{vR}
        s_barrier
        """)
        if not PTS: ts_mark(A, 6)
        def rdp(i):
            for h in range(4):
                A(f"ds_read_b128 {vr(T3+(h*5+i)*4,4)}, v{vR if h < 2 else VT3} offset:{L_W + (h&1)*20480 + i*1024}")
        for i in range(3): rdp(i)
    else:
        A.label("KF_POLL3")
        A(f"""
        s_waitcnt vmcnt(0)
        v_cmp_ne_u32 vcc, 0, v13
        s_sub_u32 s47, s47, 1
        s_cbranch_scc1 KF_GO3
        s_cmp_eq_u64 vcc, -1
        s_cbranch_scc1 KF_GO3
        buffer_load_dword v13, v{vF}, s[8:11], s42 offen sc1
        s_branch KF_POLL3
        """)
        A.label("KF_GO3")
        if not PTS: ts_mark(A, 6)
        for n in range(20):
            if n % 4 == 0 and n: A(f"s_add_u32 s43, s43, 4096")
            A(f"buffer_load_dwordx4 {vr(OF+4*n,4)}, v{vL}, s[8:11], s43 offen offset:{(n%4)*1024}")
        for n in range(20):
            b = T3 + 20 * (n % NS)
            w = f"s_waitcnt vmcnt({19-n})"
            if n == 0: w += " lgkmcnt(0)"
            elif n + NS - 1 < 20: w += " lgkmcnt(5)"
            elif n == 17: w += " lgkmcnt(10)"
            elif n == 18: w += " lgkmcnt(0)"
            A(w)
            for i in range(5): mf16(ACC3 + 4*i, b + 4*i, OF + 4*n, n == 0)
            if n + NS < 20: rd3(n + NS)
    for i in range(5):
        if P3H:
            A(f"s_waitcnt lgkmcnt({[8, 8, 8, 4, 0][i]})")
            if i < 2: rdp(i + 3)
            for h in range(2):
                a = ACC3 + 4*i + 2*h; q = T3 + 4*i + 2*h
                A(f"v_pk_add_f32 {p2(a)}, {p2(q)}, {p2(q+20)}")
                A(f"v_pk_add_f32 {p2(q+40)}, {p2(q+40)}, {p2(q+60)}")
            for h in range(2):
                a = ACC3 + 4*i + 2*h; q = T3 + 4*i + 2*h
                A(f"v_pk_add_f32 {p2(a)}, {p2(a)}, {p2(q+40)}")
        for h in range(2):
            a = ACC3 + 4*i + 2*h; j = 2*i + h
            A(f"v_cvt_pk_bf16_f32 v{a}, v{a}, v{a+1}")
            unpack(a, a)
            A(f"v_pk_mul_f32 {p2(a)}, {p2(a)}, {p2(GF+2*j)}")
            A(f"v_cvt_pk_bf16_f32 v{a}, v{a}, v{a+1}")
            unpack(a, a)
            A(f"v_pk_add_f32 {p2(a)}, {p2(a)}, {p2(XF+2*j)}")
            A(f"v_cvt_pk_bf16_f32 v{T3+j}, v{a}, v{a+1}")
        A(f"buffer_store_dwordx2 {vr(T3+2*i,2)}, v{vxo}, s[12:15], s41 offen offset:{i*32}")
    ts_end(A, 8)
    A("s_endpgm")
    A.label("KF_FB")
    A(f"""
    v_mov_b32 v{QA1+2}, 0
    v_mov_b32 v{QB1+2}, 0
    v_mov_b32 v12, 0xff800000
    v_mov_b32 v10, 0xff800000
    v_subrev_u32 v{vK0}, {L_RING}, v{vK0}
    v_subrev_u32 v{vK1}, {L_RING}, v{vK1}
    v_subrev_u32 v{vV}, {L_RING}, v{vV}
    s_mov_b32 s42, {F_KV}
    """)
    A.label("KF_FB1")
    A(f"""
    buffer_load_dwordx4 {vr(KB[0],4)}, v{vK0}, s[8:11], s42 offen
    buffer_load_dwordx2 {vr(KB[0]+4,2)}, v{vK1}, s[8:11], s42 offen
    s_add_u32 s42, s42, {TB}
    s_waitcnt vmcnt(0)
    """)
    mf(SA, KB[0], QA0); mf(SA, KB[0]+4, QA1, SA)
    mf(SB, KB[0], QB0); mf(SB, KB[0]+4, QB1, SB)
    vmax16(12, SA, 1); vmax16(10, SB, 1)
    A(f"""
    s_cmp_lt_u32 s42, {F_KV + 64*TB}
    s_cbranch_scc1 KF_FB1
    """)
    swapmax(12, 13); swapmax(10, 11)
    for r in range(32): A(f"v_mov_b32 v{OA+r}, 0")
    A(f"s_mov_b32 s42, {F_KV}")
    A.label("KF_FB2")
    A(f"""
    buffer_load_dwordx4 {vr(KB[0],4)}, v{vK0}, s[8:11], s42 offen
    buffer_load_dwordx2 {vr(KB[0]+4,2)}, v{vK1}, s[8:11], s42 offen
    buffer_load_dwordx4 {vr(VB[0],4)}, v{vV}, s[8:11], s42 offen
    buffer_load_dwordx4 {vr(VB[0]+4,4)}, v{vV}, s[8:11], s42 offen offset:672
    s_add_u32 s42, s42, {TB}
    s_waitcnt vmcnt(0)
    """)
    mf(SA, KB[0], QA0); mf(SA, KB[0]+4, QA1, SA)
    mf(SB, KB[0], QB0); mf(SB, KB[0]+4, QB1, SB)
    for S, P, m, O in ((SA, PA, 12, OA), (SB, PB, 10, OB)):
        for r in range(16): A(f"v_sub_f32 v{S+r}, v{S+r}, v{m}")
        for r in range(16): A(f"v_exp_f32 v{S+r}, v{S+r}")
        for r in range(8): A(f"v_cvt_pk_bf16_f32 v{P+r}, v{S+2*r}, v{S+2*r+1}")
        mf(O, VB[0], P, O); mf(O, VB[0]+4, P+4, O)
    A(f"""
    s_cmp_lt_u32 s42, {F_KV + 64*TB}
    s_cbranch_scc1 KF_FB2
    s_branch KF_STORE
    """)
    VW = 16
    hF = 12
    ht = 68
    vL16, vL4 = 98, 99
    WRr = 16; SG = 24
    A.label("KF_HELP")
    A(f"""
    v_lshlrev_b32 v{vL16}, 4, v{lane}
    v_lshlrev_b32 v{vL4}, 2, v{lane}
    s_mov_b32 s22, 25600
    s_mov_b32 s26, 256
    s_mov_b32 s27, 0x20000
    s_mov_b32 s30, 1280
    s_mov_b32 s31, 0x20000
    s_lshl_b32 s40, s34, 10
    s_bitcmp1_b32 s33, 0
    s_waitcnt lgkmcnt(0)
    s_cselect_b64 s[20:21], s[54:55], s[52:53]
    s_mov_b64 s[28:29], s[60:61]
    s_mov_b64 s[24:25], s[70:71]
    s_mov_b64 s[16:17], s[50:51]
    s_mov_b64 s[8:9], s[72:73]
    s_mov_b64 s[4:5], s[48:49]
    """)
    if PTS: A("s_memrealtime s[90:91]")
    A(f"""
    s_cmp_lg_u32 s34, 3
    s_cbranch_scc1 KF_HE
    """)
    if NON:
        A(f"""
        s_cmp_lg_u32 s2, 0
        s_cbranch_scc1 KF_NN
        s_memrealtime s[76:77]
        v_mov_b32 v46, 0
        s_waitcnt lgkmcnt(0)
        s_or_b32 s77, s77, 0x80000000
        v_mov_b32 v44, s76
        v_mov_b32 v45, s77
        s_mov_b64 exec, 1
        buffer_store_dwordx2 v[44:45], v46, s[24:27], 0 offen sc1
        s_mov_b64 exec, -1
        s_waitcnt vmcnt(0)
        """)
        A.label("KF_NN")
    for i in range(5): A(f"buffer_load_dword v{WRr+i}, v{vL4}, s[28:31], 0 offen offset:{i*256}")
    A.label("KF_HE")
    A(f"""
    s_cmp_ge_u32 s33, 2
    s_cbranch_scc1 KF_HNE
    """)
    for i in range(7):
        A(f"""
        s_add_u32 m0, s40, {L_E + i*4096}
        s_add_u32 s41, s40, {i*4096}
        buffer_load_dwordx4 v{vL16}, s[20:23], s41 offen lds
        """)
    A.label("KF_HNE")
    if PTS: A("s_memrealtime s[92:93]")
    A(f"""
    s_cmp_eq_u32 s34, 3
    s_cbranch_scc1 KF_H3
    """)
    dma_pat(A, [(VW, 8, 16, 4, 0)], lane, ht, 35)
    GUV = 140
    A(f"""
    v_mul_u32_u24 v9, 3456, v{lane}
    s_mul_i32 s38, s36, 27
    s_add_u32 s38, s38, s37
    s_lshl_b32 s79, s38, 4
    s_cmp_lt_u32 s37, 27
    s_cselect_b32 s14, {640*3456}, 0
    s_mov_b64 s[12:13], s[62:63]
    """)
    def gu(j):
        if j == 3: A("s_cmp_eq_u32 s34, 0\ns_cselect_b64 s[12:13], s[62:63], s[64:65]")
        if j == 4: A("s_mov_b64 s[12:13], s[64:65]")
        A(f"""
        s_add_u32 s78, s34, {3*j}
        s_min_u32 s78, s78, 19
        s_sub_u32 s76, s78, 10
        s_cselect_b32 s76, s78, s76
        s_mul_i32 s76, s76, {64*3456}
        s_add_u32 s76, s76, s79
        buffer_load_dwordx4 {vr(GUV+4*j,4)}, v9, s[12:15], s76 offen
        """)
    for j in range(GE): gu(j)
    A(f"""
    s_mul_i32 s40, s34, 40960
    s_mul_i32 s41, s34, 5120
    s_lshl_b32 s42, s34, 2
    s_add_u32 s42, s42, {L_FLG}
    v_mov_b32 v{hF}, s42
    s_waitcnt vmcnt({GE})
    s_barrier
    """)
    for i in range(7):
        if i == 6:
            A(f"""
            s_min_u32 s40, s40, {19*40960}
            s_min_u32 s41, s41, {19*5120}
            """)
        for j in range(5):
            A(f"""
            s_add_u32 m0, s41, {j*1024}
            s_nop 0
            buffer_load_dwordx4 v{VW+j}, s[16:19], s40 offen lds
            """)
        A(f"""
        s_add_u32 s40, s40, {3*40960}
        s_add_u32 s41, s41, {3*5120}
        """)
        if WSP and i == WSP - 1:
            A(f"v_mov_b32 v14, {L_FLG}")
            A.label("KF_WSW")
            A(f"""
            ds_read_b32 v13, v14 offset:44
            s_waitcnt lgkmcnt(0)
            v_readfirstlane_b32 s43, v13
            s_cmp_lg_u32 s43, 0
            s_cbranch_scc1 KF_WSG
            s_sleep 1
            s_branch KF_WSW
            """)
            A.label("KF_WSG")
    ts_mark(A, 1)
    for i in (1, 3, 5, 6):
        A(f"""
        v_mov_b32 v{ht}, {i+1}
        s_waitcnt vmcnt({5*(6-i)})
        ds_write_b32 v{hF}, v{ht}
        """)
    ts_mark(A, 2)
    A(f"v_mov_b32 v14, {L_FLG}")
    A.label("KF_PDW")
    A(f"""
    ds_read_b32 v13, v14 offset:40
    s_waitcnt lgkmcnt(0)
    v_readfirstlane_b32 s43, v13
    s_cmp_lg_u32 s43, 0
    s_cbranch_scc1 KF_PDG
    s_sleep 2
    s_branch KF_PDW
    """)
    A.label("KF_PDG")
    for j in range(GE, GS[0]): gu(j)
    A("s_branch KF_HJ")
    A.label("KF_H3")
    A(f"""
    v_mov_b32 v28, 0
    v_mov_b32 v29, 0
    v_mov_b32 v30, 0
    v_mov_b32 v31, 0
    v_mov_b32 v14, {L_FLG}
    ds_write_b128 v14, v[28:31]
    ds_write_b128 v14, v[28:31] offset:16
    s_cmp_ge_u32 s33, 2
    s_cselect_b32 s40, 1, 0
    v_mov_b32 v11, s40
    ds_write_b32 v14, v11 offset:40
    ds_write_b32 v14, v11 offset:44
    v_lshrrev_b32 v7, 4, v{lane}
    v_mul_u32_u24 v7, 320, v7
    v_bfe_u32 v8, v{lane}, 1, 1
    v_mul_u32_u24 v8, 160, v8
    v_add_u32 v7, v8, v7
    v_bfe_u32 v8, v{lane}, 2, 2
    v_lshl_add_u32 v7, v8, 5, v7
    v_and_b32 v8, 1, v{lane}
    v_lshl_add_u32 v7, v8, 4, v7
    v_add_u32 v7, {L_ASI}, v7
    v_lshlrev_b32 v40, 3, v{lane}
    s_cmp_eq_u32 s33, 0
    s_cselect_b32 s40, 0, 0x40000000
    s_cselect_b32 s41, 8, 0
    v_add_u32 v40, s40, v40
    v_cmp_gt_u32 vcc, s41, v{lane}
    v_mov_b32 v41, 0x40000000
    v_cndmask_b32 v41, v41, v{vL4}, vcc
    s_lshl_b32 s44, s32, 9
    s_add_u32 s44, s44, {F_OF}
    s_lshl_b32 s45, s32, 5
    s_add_u32 s45, s45, {F_YF}
    s_cmp_ge_u32 s33, 2
    s_cbranch_scc0 KF_H3W
    s_waitcnt vmcnt(0)
    """)
    A.label("KF_H3W")
    A("s_waitcnt vmcnt(7)")
    if NON: A("v_mov_b32 v46, 0\nbuffer_load_dwordx2 v[44:45], v46, s[24:27], 0 offen sc1")
    for i in range(5):
        b = 32 + 4 * (i % 2)
        A(f"""
        v_and_b32 v{b}, 0xffff, v{WRr+i}
        v_or_b32 v{b}, 0x3f800000, v{b}
        v_mov_b32 v{b+1}, 0
        v_lshrrev_b32 v{b+2}, 16, v{WRr+i}
        v_or_b32 v{b+2}, 0x3f800000, v{b+2}
        v_mov_b32 v{b+3}, 0
        ds_write_b128 v7, {vr(b,4)} offset:{i*1280}
        """)
    A(f"""
    s_mul_i32 s40, s33, 1280
    s_add_u32 s41, s40, {L_STG}
    v_add_u32 v7, s41, v{vL16}
    s_mul_i32 s41, s32, {2*TB}
    s_add_u32 s40, s40, s41
    s_add_u32 s40, s40, {F_KV}
    s_cmp_eq_u32 s33, 0
    s_cselect_b32 s41, 16, 20
    s_cselect_b32 s42, 33, 0
    v_mov_b32 v10, 0x40000000
    v_cmp_gt_u32 vcc, s41, v{lane}
    v_cndmask_b32 v8, v10, v{vL16}, vcc
    v_cmp_gt_u32 vcc, s42, v{lane}
    v_cndmask_b32 v9, v10, v{vL16}, vcc
    v_add_u32 v10, {L_REC}, v{vL16}
    s_mul_i32 s41, s32, 640
    s_add_u32 s41, s41, {F_REC}
    s_lshl_b32 s42, s32, {8 if NON else 3}
    s_lshl_b32 s43, s33, {7 if NON else 2}
    s_add_u32 s42, s42, s43
    s_add_u32 s42, s42, {F_FL if NON else 0}
    v_mov_b32 v11, 1
    v_mov_b32 v12, 0
    v_lshlrev_b32 v46, 3, v{lane}
    v_lshlrev_b32 v47, 7, v{lane}
    s_mov_b32 s47, {TIMEOUT}
    s_waitcnt vmcnt(0) lgkmcnt(0)
    s_barrier
    """)
    if NON:
        A.label("KF_NW")
        A(f"""
        v_readfirstlane_b32 s76, v44
        v_readfirstlane_b32 s77, v45
        s_cmp_lg_u32 s77, 0
        s_cbranch_scc1 KF_NOK
        buffer_load_dwordx2 v[44:45], v12, s[24:27], 0 offen sc1
        s_sub_u32 s47, s47, 1
        s_cbranch_scc1 KF_NTO
        s_waitcnt vmcnt(0)
        s_branch KF_NW
        """)
        A.label("KF_NTO")
        A("s_waitcnt vmcnt(0)\ns_mov_b32 s47, 0")
        A.label("KF_NOK")
    A(f"""
    s_cmp_ge_u32 s33, 2
    s_cbranch_scc1 KF_POLL0
    buffer_store_dwordx2 v[28:29], v40, s[8:11], s44 offen sc1
    buffer_store_dword v28, v41, s[8:11], s45 offen sc1
    """)
    A.label("KF_PUBW")
    A(f"""
    ds_read_b128 v[28:31], v14 offset:16
    s_waitcnt lgkmcnt(0)
    v_min3_u32 v28, v28, v29, v30
    v_min_u32 v28, v28, v31
    v_readfirstlane_b32 s43, v28
    s_cmp_eq_u32 s43, 0
    s_cbranch_scc1 KF_PUBW
    """)
    ts_mark(A, 1)
    A(f"""
    ds_read_b128 {vr(SG,4)}, v7
    ds_read_b128 {vr(SG+4,4)}, v7 offset:1024
    ds_read_b128 {vr(SG+8,4)}, v7 offset:{TB}
    ds_read_b128 {vr(SG+12,4)}, v7 offset:{TB+1024}
    ds_read_b128 {vr(SG+16,4)}, v10
    s_waitcnt lgkmcnt(4)
    buffer_store_dwordx4 {vr(SG,4)}, v{vL16}, s[8:11], s40 offen sc1
    s_waitcnt lgkmcnt(3)
    buffer_store_dwordx4 {vr(SG+4,4)}, v8, s[8:11], s40 offen offset:1024 sc1
    s_waitcnt lgkmcnt(2)
    buffer_store_dwordx4 {vr(SG+8,4)}, v{vL16}, s[8:11], s40 offen offset:{TB} sc1
    s_waitcnt lgkmcnt(1)
    buffer_store_dwordx4 {vr(SG+12,4)}, v8, s[8:11], s40 offen offset:{TB+1024} sc1
    s_waitcnt lgkmcnt(0)
    buffer_store_dwordx4 {vr(SG+16,4)}, v9, s[8:11], s41 offen sc1
    ds_write_b32 v14, v11 offset:44
    s_waitcnt vmcnt(0)
    s_mov_b64 exec, {'0xff' if NON else '1'}
    {'buffer_store_dwordx2 v[44:45], v46, s[8:11], s42 offen sc1' if NON else 'buffer_store_dword v11, v12, s[24:27], s42 offen sc1'}
    s_mov_b64 exec, -1
    ds_write_b32 v14, v11 offset:40
    """)
    ts_mark(A, 2)
    A.label("KF_POLL0")
    if PW:
        A(f"""
        ds_read_b128 v[28:31], v14
        s_waitcnt lgkmcnt(0)
        v_min3_u32 v28, v28, v29, v30
        v_readfirstlane_b32 s43, v28
        s_cmp_ge_u32 s43, {PW}
        s_cbranch_scc1 KF_POLL1P
        s_sleep 1
        s_branch KF_POLL0
        """)
    A.label("KF_POLL1P")
    A(f"s_mov_b32 s43, {F_FL}")
    A.label("KF_POLL1")
    A(f"""
    {'buffer_load_dwordx2 v[48:49], v47, s[8:11], s43 offen sc1' if NON else f'buffer_load_dword v13, v{vL4}, s[24:27], 0 offen sc1'}
    s_sub_u32 s47, s47, 1
    s_cbranch_scc1 KF_GO1
    s_waitcnt vmcnt(0)
    {'v_cmp_eq_u64 vcc, s[76:77], v[48:49]' if NON else 'v_cmp_ne_u32 vcc, 0, v13'}
    s_cmp_eq_u64 vcc, exec
    s_cbranch_scc1 KF_GO1
    """)
    if PSLEEP: A(f"s_sleep {PSLEEP}")
    A("s_branch KF_POLL1")
    A.label("KF_GO1")
    A("s_mov_b64 exec, -1")
    ts_mark(A, 3)
    for gi in range(2):
        A(f"""
        s_add_u32 s43, s36, {gi}
        s_and_b32 s43, s43, 7
        s_mul_i32 s43, s43, {SLOT}
        """)
        for i in range(21):
            if i % 4 == 0:
                A(f"""
                s_mov_b32 m0, {L_RING + gi*SLOT + i*1024}
                s_add_u32 s42, s43, {F_KV + i*1024}
                """)
            A(f"buffer_load_dwordx4 v{vL16}, s[8:11], s42 offen offset:{(i%4)*1024} lds")
    A("s_waitcnt vmcnt(21)")
    KEY = 4; XFh = 16; WD = 40; BF = 56; hACC = 64; ST = 68; TT = 72; Y = 84
    vL8, vGU, vX, vTR, vP = 8, 9, 11, 12, 13
    hl15, hg = 14, 15
    P1, P2 = 88, 93
    YL = 128; SP = 200; hCST = 126
    A.label("KF_HJ")
    dma_pat(A, [(P1, 20, 4, 8, 0), (P2, 20, 80, 40, 16)], lane, 100, 35)
    A(f"""
    v_lshlrev_b32 v{vL8}, 3, v{lane}
    v_lshrrev_b32 v5, 1, v{lane}
    v_mul_u32_u24 v5, 640, v5
    v_and_b32 v6, 1, v{lane}
    v_lshl_add_u32 v5, v6, 3, v5
    v_mul_u32_u24 v{vGU}, 3456, v{lane}
    v_mov_b32 v{hl15}, v{l15}
    v_mov_b32 v{hg}, v{g}
    v_lshlrev_b32 v{vX}, 4, v{g}
    s_mul_i32 s38, s36, 27
    s_add_u32 s38, s38, s37
    s_mul_i32 s39, s36, 5
    s_add_u32 s39, s39, s37
    s_add_u32 s39, s39, {216-27}
    s_cmp_lt_u32 s37, 27
    s_cselect_b32 s39, s38, s39
    s_cselect_b32 s14, {640*3456}, 0
    s_cselect_b32 s22, {1728*1280}, 0
    s_mov_b64 s[20:21], s[66:67]
    s_mov_b64 s[16:17], s[56:57]
    s_mul_i32 s46, s34, 5376
    s_mov_b32 s43, {F_REC+512}
    s_barrier
    """)
    ts_mark(A, 4)
    A(f"""
    buffer_load_dwordx2 {vr(KEY,2)}, v5, s[8:11], s43 offen
    s_mul_i32 s26, s38, 10240
    s_mul_i32 s27, s34, 320
    s_add_u32 s26, s26, s27
    s_add_u32 s28, s26, 5120
    """)
    for f in range(8):
        A(f"buffer_load_dwordx2 {vr(WD+2*f,2)}, v{vL8}, s[20:23], s{26 if f < 4 else 28} offen offset:{(f%4)*1280}")
    def wo_block(blk0, pat):
        if pat == P1:
            A(f"""
            s_add_u32 s76, s34, {blk0}
            s_mul_i32 s77, s76, 51200
            s_mul_i32 s76, s76, 5120
            """)
        else:
            A(f"""
            s_mul_i32 s77, s34, 204800
            s_add_u32 s76, s34, {blk0}
            s_mul_i32 s76, s76, 5120
            """)
        for j in range(5):
            A(f"""
            s_add_u32 m0, s76, {j*1024}
            s_nop 0
            buffer_load_dwordx4 v{pat+j}, s[16:19], s77 offen lds
            """)
    A(f"""
    v_mov_b32 v6, 0
    s_cmp_eq_u32 s34, 3
    s_cbranch_scc1 KF_NGW
    """)
    for j in range(GS[0], GS[1]): gu(j)
    A(f"""
    s_waitcnt vmcnt({8+GS[1]-GS[0]})
    s_branch KF_NGW2
    """)
    A.label("KF_NGW")
    A("s_waitcnt vmcnt(8)")
    A.label("KF_NGW2")
    A(f"""
    v_max_u32 v{KEY}, v{KEY}, v{KEY+1}
    """)
    for sh in (8, 4, 2, 1):
        A(f"v_max_u32_dpp v{KEY}, v{KEY}, v{KEY} row_ror:{sh} row_mask:0xf bank_mask:0xf")
    A(f"""
    v_mov_b32 v{KEY+1}, v{KEY}
    v_permlane16_swap_b32 v{KEY}, v{KEY+1}
    v_max_u32 v{KEY}, v{KEY}, v{KEY+1}
    v_mov_b32 v{KEY+1}, v{KEY}
    v_permlane32_swap_b32 v{KEY}, v{KEY+1}
    v_max_u32 v{KEY}, v{KEY}, v{KEY+1}
    v_readfirstlane_b32 s44, v{KEY}
    s_andn2_b32 s45, 0x7ff, s44
    s_mul_i32 s40, s45, 1280
    s_add_u32 s41, s40, s27
    s_lshr_b32 s42, s45, 6
    s_mul_i32 s43, s42, 640
    s_and_b32 s47, s45, 63
    s_lshl_b32 s47, s47, 3
    s_add_u32 s43, s43, s47
    s_add_u32 s43, s43, {F_REC}
    """)
    for i in range(5):
        A(f"buffer_load_dwordx4 {vr(XFh+4*i,4)}, v{vX}, s[4:7], s41 offen offset:{i*64}")
    A(f"buffer_load_dwordx2 {vr(ST,2)}, v6, s[8:11], s43 offen")
    KN, KT, vKa, vKb = 220, 224, 222, 223
    def knorm(gi):
        if not SWE: return
        o = (gi & 1) * SLOT
        A(f"""
        ds_read_b128 {vr(KT,4)}, v{vKa} offset:{o}
        ds_read_b64 {vr(KT+4,2)}, v{vKb} offset:{o+1024}
        ds_read_b128 {vr(KT+6,4)}, v{vKa} offset:{o+TB}
        ds_read_b64 {vr(KT+10,2)}, v{vKb} offset:{o+TB+1024}
        s_waitcnt lgkmcnt(0)
        """)
        for b in (KT, KT+6):
            for j in range(6):
                A(f"v_dot2_f32_bf16 v{KN+1}, v{b+j}, v{b+j}, {'0' if j == 0 else f'v{KN+1}'}")
            A(f"v_max_f32 v{KN}, v{KN}, v{KN+1}")
    def gts(n):
        if GTS and TS: A(f"s_memrealtime s[{80+2*n}:{81+2*n}]")
    def ring(gi):
        A(f"""
        s_add_u32 s26, s36, {gi}
        s_and_b32 s26, s26, 7
        s_mul_i32 s26, s26, {SLOT}
        s_add_u32 m0, s46, {L_RING + (gi & 1)*SLOT}
        s_add_u32 s26, s26, s46
        """)
        for r in range(4): A(f"buffer_load_dwordx4 v{vL16}, s[8:11], s26 offen offset:{r*1024} lds")
        A(f"""
        s_add_u32 m0, s46, {L_RING + (gi & 1)*SLOT + 4096}
        s_add_u32 s26, s26, 4096
        buffer_load_dwordx4 v{vL16}, s[8:11], s26 offen lds
        buffer_load_dword v{vL4}, s[8:11], s26 offen offset:1024 lds
        """)
    A(f"""
    v_bfe_u32 v{vTR}, v{lane}, 2, 2
    v_lshl_add_u32 v{vTR}, v{hg}, 3, v{vTR}
    v_lshlrev_b32 v{vTR}, 4, v{vTR}
    v_and_b32 v7, 1, v{lane}
    v_lshl_add_u32 v{vTR}, v7, 3, v{vTR}
    v_bfe_u32 v7, v{lane}, 1, 1
    v_mul_u32_u24 v7, 10240, v7
    s_mul_i32 s26, s34, 2560
    v_add3_u32 v{vTR}, v{vTR}, v7, s26
    s_lshl_b32 s26, s34, 9
    s_add_u32 s26, s26, {L_P}
    v_add_u32 v{vP}, s26, v{vL8}
    s_mul_i32 s26, s34, {2*TB}
    s_add_u32 s26, s26, {L_RING}
    v_add_u32 v{vKa}, s26, v{vL16}
    v_and_b32 v{vKb}, 31, v{lane}
    v_lshlrev_b32 v{vKb}, 3, v{vKb}
    v_add_u32 v{vKb}, s26, v{vKb}
    v_mov_b32 v{KN}, 0
    """)
    knorm(0)
    A("""
    s_waitcnt lgkmcnt(0)
    s_barrier
    """)
    gts(1)
    ring(2)
    wo_block(4, P1)
    knorm(1)
    A(f"""
    s_cmp_eq_u32 s34, 3
    s_cbranch_scc1 KF_NGW3
    """)
    for j in range(GS[1], 7): gu(j)
    A(f"""
    s_lshl_b32 s26, s34, 10
    v_add_u32 v7, s26, v{vL16}
    s_min_u32 s26, s26, 1024
    v_add_u32 v6, s26, v{vL16}
    s_waitcnt vmcnt({7-GS[1]})
    """)
    for j in range(7):
        if j >= GS[1]: A(f"s_waitcnt vmcnt({6-j})")
        A(f"ds_write_b128 v{7 if j < 6 else 6}, {vr(GUV+4*j,4)} offset:{L_W + j*3072}")
    A.label("KF_NGW3")
    A(f"""
    v_cmp_eq_u32 vcc, 1, v{hl15}
    v_mov_b32 v7, 0x3f803f80
    s_waitcnt vmcnt(0)
    """)
    for r in range(20): A(f"v_cndmask_b32 v{XFh+r}, v{XFh+r}, v7, vcc")
    A("s_waitcnt lgkmcnt(0)\ns_barrier")
    gts(2)
    ring(3)
    wo_block(8, P1)
    knorm(2)
    for i in range(5):
        b = BF + 4 * (i & 1)
        A(f"""
        ds_read_b64_tr_b16 {vr(b,2)}, v{vTR} offset:{i*512}
        ds_read_b64_tr_b16 {vr(b+2,2)}, v{vTR} offset:{i*512+64}
        s_waitcnt lgkmcnt(0)
        """)
        mf16(hACC, XFh + 4*i, b, i == 0)
    A(f"""
    v_lshlrev_b32 v7, 3, v{hl15}
    v_add_u32 v7, {L_P}, v7
    ds_write_b64 v{vP}, {vr(hACC,2)}
    s_waitcnt vmcnt(0) lgkmcnt(0)
    s_barrier
    """)
    gts(3)
    ring(4)
    wo_block(0, P1)
    knorm(3)
    for i in range(4): A(f"ds_read_b64 {vr(TT+2*i,2)}, v7 offset:{i*512}")
    A(f"""
    s_mov_b32 s26, 0x05040100
    s_mov_b32 s27, 0x07060302
    s_mul_i32 s39, s39, 2560
    s_mul_i32 s28, s34, 640
    s_add_u32 s39, s39, s28
    s_add_u32 s39, s39, {F_YP}
    s_waitcnt lgkmcnt(0)
    v_add_f32 v{TT}, v{TT}, v{TT+2}
    v_add_f32 v{TT+1}, v{TT+1}, v{TT+3}
    v_add_f32 v{TT+4}, v{TT+4}, v{TT+6}
    v_add_f32 v{TT+5}, v{TT+5}, v{TT+7}
    v_add_f32 v{TT}, v{TT}, v{TT+4}
    v_add_f32 v{TT+1}, v{TT+1}, v{TT+5}
    v_fma_f32 v{TT}, -v{ST}, v{TT+1}, v{TT}
    v_mul_f32 v{TT}, v{TT}, v{ST+1}
    """)
    rbf(A, TT, TT)
    A(f"""
    v_mul_f32 v{TT+1}, {f32(-LOG2E)}, v{TT}
    v_exp_f32 v{TT+1}, v{TT+1}
    v_mov_b32_dpp v{TT+2}, v{TT} row_ror:8 row_mask:0xf bank_mask:0xf
    v_add_f32 v{TT+1}, 1.0, v{TT+1}
    v_rcp_f32 v{TT+1}, v{TT+1}
    v_mul_f32 v{TT+1}, v{TT+1}, v{TT}
    """)
    rbf(A, TT+1, TT+1)
    A(f"""
    v_mul_f32 v{TT+1}, v{TT+1}, v{TT+2}
    v_cvt_pk_bf16_f32 v{TT+1}, v{TT+1}, v{TT+1}
    """)
    for f in range(8): A(f"v_readlane_b32 s{48+f}, v{TT+1}, {f}")
    for fp in range(4): A(f"s_pack_hh_b32_b16 s{48+fp}, s{48+2*fp}, s{49+2*fp}")
    for fp in range(4):
        r0, r1 = WD + 4*fp, WD + 4*fp + 2
        for c in range(4):
            A(f"v_perm_b32 v{TT+4+c}, v{r1+(c>>1)}, v{r0+(c>>1)}, s{26+(c&1)}")
        for c in range(4):
            A(f"v_dot2_f32_bf16 v{Y+c}, v{TT+4+c}, s{48+fp}, {'0' if fp == 0 else f'v{Y+c}'}")
    A(f"""
    s_mov_b32 exec_hi, 0xff
    s_waitcnt vmcnt(0)
    buffer_store_dwordx4 {vr(Y,4)}, v{vL16}, s[8:11], s39 offen sc1
    s_mov_b32 exec_hi, -1
    s_getreg_b32 s28, hwreg(HW_REG_XCC_ID)
    s_and_b32 s28, s28, 15
    s_add_u32 s28, s28, 1
    v_mov_b32 v7, s28
    s_lshl_b32 s29, s32, 5
    s_add_u32 s29, s29, {F_YF}
    s_lshl_b32 s30, s33, 2
    s_add_u32 s30, s30, s29
    s_cmp_eq_u32 s34, 0
    s_cselect_b32 s31, 0, 0x40000000
    v_mov_b32 v5, s31
    s_barrier
    """)
    gts(5)
    ring(5)
    wo_block(12, P1)
    knorm(4)
    A(f"""
    s_waitcnt vmcnt(0)
    s_barrier
    s_mov_b64 exec, 1
    buffer_store_dword v7, v5, s[8:11], s30 offen sc1
    s_mov_b64 exec, -1
    """)
    gts(6)
    ring(6)
    wo_block(16, P2)
    knorm(5)
    A(f"""
    s_cmp_eq_u32 s42, s32
    s_cselect_b32 s31, 1, 0
    s_cselect_b32 s30, {F_YF}, s29
    s_cselect_b32 s26, 63, 1
    v_and_b32 v5, s26, v{lane}
    v_lshlrev_b32 v5, 4, v5
    v_and_b32 v9, 7, v{lane}
    v_lshlrev_b32 v9, 2, v9
    s_mov_b32 s47, {TIMEOUT}
    s_waitcnt vmcnt(0)
    s_barrier
    """)
    ring(7)
    knorm(6)
    A.label("KF_POLL2")
    A(f"""
    buffer_load_dwordx4 {vr(TT,4)}, v5, s[8:11], s30 offen sc1
    buffer_load_dword v{TT+4}, v9, s[8:11], s29 offen sc1
    s_sub_u32 s47, s47, 1
    s_cbranch_scc1 KF_GO2
    s_waitcnt vmcnt(0)
    v_min3_u32 v{TT}, v{TT}, v{TT+1}, v{TT+2}
    v_min3_u32 v{TT}, v{TT}, v{TT+3}, v{TT+4}
    v_cmp_ne_u32 vcc, 0, v{TT}
    s_cmp_eq_u64 vcc, -1
    s_cbranch_scc0 KF_POLL2
    """)
    A.label("KF_GO2")
    vy = 10
    A(f"""
    s_waitcnt vmcnt(0)
    v_cmp_eq_u32 vcc, s28, v{TT+4}
    s_cmp_eq_u64 vcc, -1
    s_cselect_b32 s26, 1, 0
    v_mov_b32 v{TT}, s26
    v_mov_b32 v{TT+1}, s45
    v_mov_b32 v7, {L_FLG}
    ds_write_b64 v7, {vr(TT,2)} offset:32
    s_cmp_eq_u32 s31, 0
    s_cbranch_scc1 KF_NS1
    v_mul_u32_u24 v5, 3277, v{lane}
    v_lshrrev_b32 v5, 16, v5
    v_mul_u32_u24 v7, 20, v5
    v_sub_u32 v7, v{lane}, v7
    v_min_u32 v5, 2, v5
    s_mul_i32 s26, s34, 3
    v_add_u32 v5, s26, v5
    v_mul_u32_u24 v{vy}, 320, v5
    v_lshl_add_u32 v{vy}, v7, 4, v{vy}
    v_add_u32 v{vy}, {L_Y}, v{vy}
    v_mul_u32_u24 v5, 2560, v5
    v_lshl_add_u32 v5, v7, 4, v5
    s_lshl_b32 s26, s35, 1
    s_add_u32 s26, s26, {F_YP}
    """)
    for i in range(18):
        A(f"""
        buffer_load_dwordx4 {vr(YL+4*i,4)}, v5, s[8:11], s26 offen
        s_add_u32 s26, s26, {12*2560}
        """)
    A(f"""
    s_add_u32 s26, s40, s35
    buffer_load_dword v{SP}, v{vL4}, s[4:7], s26 offen
    s_waitcnt vmcnt(1)
    """)
    for i in range(1, 18):
        A(f"v_pk_add_f32 {p2(YL)}, {p2(YL)}, {p2(YL+4*i)}")
        A(f"v_pk_add_f32 {p2(YL+2)}, {p2(YL+2)}, {p2(YL+4*i+2)}")
    A(f"ds_write_b128 v{vy}, {vr(YL,4)}")
    A.label("KF_NS1")
    A(f"""
    s_waitcnt vmcnt(0) lgkmcnt(0)
    s_barrier
    """)
    A(f"""
    s_cmp_eq_u32 s34, 0
    s_cselect_b32 s31, s31, 0
    s_cmp_eq_u32 s31, 0
    s_cbranch_scc1 KF_NS2
    v_add_u32 v{vy}, {L_Y}, v{vL8}
    v_mov_b32 v{hCST}, {f32(-LOG2E)}
    v_mov_b32 v{hCST+1}, 1.0
    """)
    for i in range(12): A(f"ds_read_b64 {p2(YL+2*i)}, v{vy} offset:{i*320}")
    A(f"""
    s_lshr_b32 s26, s44, 16
    s_bitcmp1_b32 s44, 31
    s_cselect_b32 s27, 0x8000, -1
    s_xor_b32 s26, s26, s27
    s_lshl_b32 s26, s26, 16
    v_mul_f32 v{SP+4}, s26, v{hCST}
    v_exp_f32 v{SP+4}, v{SP+4}
    v_add_f32 v{SP+4}, 1.0, v{SP+4}
    v_rcp_f32 v{SP+4}, v{SP+4}
    """)
    rbf(A, SP+4, SP+4)
    unpack(SP+6, SP)
    A("s_waitcnt lgkmcnt(0)")
    for i in range(1, 12): A(f"v_pk_add_f32 {p2(YL)}, {p2(YL)}, {p2(YL+2*i)}")
    A(f"v_cvt_pk_bf16_f32 v{YL}, v{YL}, v{YL+1}")
    unpack(YL, YL)
    A(f"v_pk_mul_f32 {p2(YL)}, {p2(YL)}, {p2(SP+4)} op_sel_hi:[1,0]")
    A(f"v_cvt_pk_bf16_f32 v{YL}, v{YL}, v{YL+1}")
    unpack(YL, YL)
    gpair(hCST, SP+6, ST, SP+8, SP+10, SP+12, y=YL)
    A(f"""
    v_add_u32 v{vy}, {L_G2}, v{vL4}
    ds_write_b32 v{vy}, v{SP+8}
    """)
    A.label("KF_NS2")
    WF = 16; AC = 116; OFh = 196
    if P3H:
        assert not SWE
        A(f"""
        v_lshrrev_b32 v4, 2, v{lane}
        v_mul_u32_u24 v4, 160, v4
        v_and_b32 v5, 3, v{lane}
        v_lshl_add_u32 v4, v5, 3, v4
        s_mul_i32 s26, s34, 5120
        s_add_u32 s27, s26, 81920
        v_add_u32 v5, s27, v4
        s_lshl_b32 s26, s26, 2
        v_add_u32 v4, s26, v4
        """)
        for k in range(5):
            for i in range(5):
                A(f"ds_read_b64_tr_b16 {vr(WF+20*k+4*i,2)}, v{4 if k < 4 else 5} offset:{L_W + (k%4)*5120 + i*32}")
                A(f"ds_read_b64_tr_b16 {vr(WF+20*k+4*i+2,2)}, v{4 if k < 4 else 5} offset:{L_W + (k%4)*5120 + i*32 + 2560}")
            A("s_waitcnt lgkmcnt(5)")
        A(f"""
        v_lshlrev_b32 v5, 4, v{lane}
        s_mul_i32 s26, s34, 20480
        v_add_u32 v8, s26, v5
        v_bfe_u32 v6, v{lane}, 3, 2
        v_lshlrev_b32 v6, 7, v6
        v_and_b32 v7, 7, v{lane}
        v_lshl_add_u32 v6, v7, 2, v6
        s_lshl_b32 s42, s32, 9
        s_add_u32 s42, s42, {F_OF}
        s_mul_i32 s43, s32, 81920
        s_lshl_b32 s26, s34, 12
        s_add_u32 s43, s43, s26
        s_add_u32 s43, s43, {F_O}
        s_mul_i32 s28, s34, 3072
        s_sub_u32 s28, 16384, s28
        s_lshl_b32 s26, s34, 1
        s_lshl_b32 s30, 0x03030303, s26
        s_mov_b32 s31, s30
        s_mov_b32 s47, {TIMEOUT}
        """)
        if DRY:
            A("""
            s_mov_b32 s27, s43
            s_mov_b64 exec, 0
            s_branch KF_GO3D
            """)
            A.label("KF_DRYRET")
            A("s_mov_b64 exec, -1\ns_mov_b32 s43, s27")
    if not SWE: A(f"""
    s_waitcnt vmcnt(0) lgkmcnt(0)
    s_barrier
    """)
    if P3H:
        A.label("KF_POLL3")
        A(f"""
        buffer_load_dword v7, v6, s[8:11], s42 offen sc1
        s_sub_u32 s47, s47, 1
        s_cbranch_scc1 KF_GO3
        s_waitcnt vmcnt(0)
        v_cmp_ne_u32 vcc, 0, v7
        s_and_b64 vcc, vcc, s[30:31]
        s_cmp_eq_u64 vcc, s[30:31]
        s_cbranch_scc0 KF_POLL3
        """)
        A.label("KF_GO3")
        A("s_waitcnt vmcnt(0)")
        ts_mark(A, 6)
        A.label("KF_GO3D")
        def ld3(t):
            for k in range(5):
                if k == 4: A("s_add_u32 s26, s43, s28")
                A(f"buffer_load_dwordx4 {vr(OFh+4*((5*t+k)%15),4)}, v5, s[8:11], s{26 if k == 4 else 43} offen offset:{(k%4)*1024}")
            A("s_add_u32 s43, s43, 20480")
        def wr3(t):
            for i in range(5): A(f"ds_write_b128 v8, {vr(AC+20*t+4*i,4)} offset:{L_W + (t*5+i)*1024}")
        for t in range(3): ld3(t)
        for t in range(4):
            for k in range(5):
                iss = 15 if t == 0 else 20
                A(f"s_waitcnt vmcnt({iss - (5*t+k) - 1})")
                if DRY: A(f"s_cbranch_execz KF_SK{t}_{k}")
                for i in range(5): mf16(AC+20*t+4*i, WF+20*k+4*i, OFh+4*((5*t+k)%15), k == 0)
                if DRY: A.label(f"KF_SK{t}_{k}")
                if k == 1 and t: wr3(t-1)
            if t == 0: ld3(3)
        A("s_nop 7\ns_nop 7")
        A("s_waitcnt lgkmcnt(5)")
        wr3(3)
        if DRY: A("s_cbranch_execz KF_DRYRET")
        A("s_waitcnt lgkmcnt(0)\ns_barrier")
    if SWE:
        knorm(7)
        for sh in (8, 4, 2, 1):
            A(f"v_max_f32_dpp v{KN}, v{KN}, v{KN} row_ror:{sh} row_mask:0xf bank_mask:0xf")
        A(f"""
    v_mov_b32 v{KN+1}, v{KN}
    v_permlane16_swap_b32 v{KN}, v{KN+1}
    v_max_f32 v{KN}, v{KN}, v{KN+1}
    v_mov_b32 v{KN+1}, v{KN}
    v_permlane32_swap_b32 v{KN}, v{KN+1}
    v_add_f32 v{KN}, v{KN}, v{KN+1}
    s_lshl_b32 s26, s34, 2
    s_add_u32 s26, s26, {L_FLG+48}
    v_mov_b32 v{KN+1}, s26
    ds_write_b32 v{KN+1}, v{KN}
    s_waitcnt lgkmcnt(0)
    s_barrier
        """)
    ts_end(A, 8)
    A.label("KF_END")
    A("s_endpgm")
    return A, LDS, 256
```

```python
from asmlib import Asm
from commonf import *
import math
LOG2E = math.log2(math.e)
TIMEOUT = 1 << 17
PSLEEP = int(os.environ.get('PSLEEP', '0'))
GTS = int(os.environ.get('GTS', '0'))
PTS = int(os.environ.get('PTS', '0'))
SWE = int(os.environ.get('SWE', '0'))
GUE = int(os.environ.get('GUE', '1'))
CLK = int(os.environ.get('CLK', '0'))
GS = [int(x) for x in os.environ.get('GS', '3,5').split(',')]
IL = int(os.environ.get('IL', '4'))
WSP = int(os.environ.get('WSP', '0'))
PW = int(os.environ.get('PW', '4'))
BFL = 0
GE = int(os.environ.get('GE', '0'))
P3H = int(os.environ.get('P3H', '0'))
DRY = int(os.environ.get('DRY', '0'))
ROT = int(os.environ.get('ROT', '1'))
PT = int(os.environ.get('PT', '0'))
HD = int(os.environ.get('HD', '1'))
NON = int(os.environ.get('NON', '1'))
F_FL = 0x38000

L_W = 0
L_RING = 102400; SLOT = 8 * TB
L_E = L_RING
L_STG = L_RING + 25600
L_REC = L_STG + 2 * TB
L_M = L_RING + 2 * SLOT
L_ASI = L_M
L_FLG = L_M + 6400
L_CSE = L_FLG + 64
L_CSW = L_CSE + 384
L_P = L_CSW + 960
L_Y = L_P + 2048
L_G2 = L_Y + 3840
LDS = L_G2 + 256

def rbf(A, dst, src):
    A(f"v_cvt_pk_bf16_f32 v{dst}, v{src}, v{src}")
    A(f"v_lshlrev_b32 v{dst}, 16, v{dst}")

def dma_pat(A, pats, lane, t0, s_col):
    q, rho, c, g1, g2, r3, u = range(t0, t0 + 7)
    for i in range(5):
        A(f"""
        v_add_u32 v{q}, {64*i}, v{lane}
        v_mul_u32_u24 v{rho}, 6554, v{q}
        v_lshrrev_b32 v{rho}, 16, v{rho}
        v_mul_u32_u24 v{c}, 10, v{rho}
        v_sub_u32 v{c}, v{q}, v{c}
        v_lshlrev_b32 v{c}, 4, v{c}
        v_add_u32 v{c}, s{s_col}, v{c}
        v_bfe_u32 v{g1}, v{rho}, 2, 1
        v_bfe_u32 v{g2}, v{rho}, 3, 1
        v_and_b32 v{r3}, 3, v{rho}
        v_lshrrev_b32 v{rho}, 4, v{rho}
        """)
        for VW, a, b, c4, k0 in pats:
            A(f"""
            v_mad_u32_u24 v{u}, v{g1}, {a}, v{r3}
            v_mov_b32 v{q}, {b}
            v_mad_u32_u24 v{u}, v{g2}, v{q}, v{u}
            v_mad_u32_u24 v{u}, v{rho}, {c4}, v{u}
            v_add_u32 v{u}, {k0}, v{u}
            v_mul_u32_u24 v{u}, 1280, v{u}
            v_add_u32 v{VW+i}, v{u}, v{c}
            """)

def gen_kf(label):
    A = Asm()
    lane, g, l15 = 2, 3, 4
    def mf16(d, a, b, first):
        A(f"v_mfma_f32_16x16x32_bf16 {vr(d,4)}, {vr(a,4)}, {vr(b,4)}, {'0' if first else vr(d,4)}")
    def mf(d, a, b, c=None):
        A(f"v_mfma_f32_32x32x16_bf16 {vr(d,16)}, {vr(a,4)}, {vr(b,4)}, {'0' if c is None else vr(c,16)}")
    def unpack(d, s):
        A(f"v_and_b32 v{d+1}, 0xffff0000, v{s}")
        A(f"v_lshlrev_b32 v{d}, 16, v{s}")
    def gpair(CST, xf, st, gd, a, b, y=None):
        A(f"v_pk_add_f32 {p2(a)}, {p2(xf)}, {p2(st)} op_sel_hi:[1,0] neg_lo:[0,1] neg_hi:[0,1]")
        A(f"v_cvt_pk_bf16_f32 v{a}, v{a}, v{a+1}")
        unpack(a, a)
        A(f"v_pk_mul_f32 {p2(a)}, {p2(a)}, {p2(st)} op_sel:[0,1] op_sel_hi:[1,1]")
        A(f"v_cvt_pk_bf16_f32 v{a}, v{a}, v{a+1}")
        unpack(a, a)
        if y is not None:
            A(f"v_pk_add_f32 {p2(a)}, {p2(a)}, {p2(y)}")
            A(f"v_cvt_pk_bf16_f32 v{a}, v{a}, v{a+1}")
            unpack(a, a)
        A(f"v_pk_mul_f32 {p2(b)}, {p2(a)}, {p2(CST)} op_sel_hi:[1,0]")
        A(f"v_exp_f32 v{b}, v{b}")
        A(f"v_exp_f32 v{b+1}, v{b+1}")
        A(f"v_pk_add_f32 {p2(b)}, {p2(b)}, {p2(CST)} op_sel:[0,1] op_sel_hi:[1,1]")
        A(f"v_rcp_f32 v{b}, v{b}")
        A(f"v_rcp_f32 v{b+1}, v{b+1}")
        A(f"v_pk_mul_f32 {p2(a)}, {p2(a)}, {p2(b)}")
        A(f"v_cvt_pk_bf16_f32 v{gd}, v{a}, v{a+1}")
    def e_addrs(VE, VH, VHS, t):
        A(f"""
        v_bfe_u32 v{t}, v{lane}, 2, 2
        v_and_b32 v{t+1}, 3, v{lane}
        v_lshl_add_u32 v{t+2}, v{g}, 3, v{t}
        v_mul_u32_u24 v{t+2}, 40, v{t+2}
        v_add_u32 v{t+2}, {L_E}, v{t+2}
        v_lshl_add_u32 v{VE}, v{t+1}, 3, v{t+2}
        v_add_u32 v{t+2}, 32, v{t+2}
        v_lshl_add_u32 v{t}, v{g}, 2, v{t}
        v_lshlrev_b32 v{t}, 3, v{t}
        v_add_u32 v{t}, {L_ASI}, v{t}
        v_cmp_eq_u32 vcc, 0, v{t+1}
        v_cndmask_b32 v{VH}, v{t}, v{t+2}, vcc
        v_mov_b32 v{t}, 320
        v_mov_b32 v{t+2}, 1280
        v_cndmask_b32 v{VHS}, v{t}, v{t+2}, vcc
        """)
    def t_addrs(VTa, VTb, t):
        A(f"""
        v_lshrrev_b32 v{t}, 2, v{lane}
        v_mul_u32_u24 v{t}, 160, v{t}
        v_and_b32 v{t+1}, 1, v{lane}
        v_bfe_u32 v{t+2}, v{lane}, 1, 1
        v_mad_u32_u24 v{VTa}, v{t+1}, 40, v{t}
        v_lshl_add_u32 v{VTa}, v{t+2}, 4, v{VTa}
        v_and_b32 v{t+1}, 3, v{lane}
        v_mad_u32_u24 v{VTb}, v{t+1}, 40, v{t}
        v_add_u32 v{VTb}, 32, v{VTb}
        """)
    A.label(label)
    A(f"""
    s_cmp_ge_u32 s2, 256
    s_cbranch_scc1 KF_END
    """)
    ts_mark(A, 0)
    A(f"""
    s_load_dwordx16 s[48:63], s[0:1], 0
    s_load_dwordx8 s[64:71], s[0:1], 64
    s_load_dwordx2 s[72:73], s[0:1], 96
    s_getpc_b64 s[74:75]
    """)
    A.label("KF_PC")
    A(f"""
    v_lshrrev_b32 v1, 6, v0
    v_lshlrev_b32 v5, 7, v0
    v_min_u32 v5, CODE_END-KF_PC-4, v5
    global_load_dword v6, v5, s[74:75]
    v_and_b32 v{lane}, 63, v0
    v_readfirstlane_b32 s3, v1
    s_and_b32 s36, s2, 7
    s_lshr_b32 s37, s2, 3
    s_and_b32 s33, s37, 7
    s_lshr_b32 s38, s37, 3
    s_lshl_b32 s32, s36, 2
    s_add_u32 s32, s32, s38
    s_mul_i32 s35, s33, 160
    v_lshrrev_b32 v{g}, 4, v{lane}
    v_and_b32 v{l15}, 15, v{lane}
    s_mov_b32 s6, 2621440
    s_mov_b32 s7, 0x20000
    s_mov_b32 s10, {WS_SIZE}
    s_mov_b32 s11, 0x20000
    s_mov_b32 s15, 0x20000
    s_mov_b32 s18, 819200
    s_mov_b32 s19, 0x20000
    s_mov_b32 s23, 0x20000
    s_and_b32 s34, s3, 3
    s_cmp_ge_u32 s3, 4
    s_cbranch_scc1 KF_HELP
    """)
    VX, vxo, VE, VH, VHS, VTa, VTb = 7, 8, 9, 10, 11, 12, 13
    ES = 16; T = 16; ACC = 36; AE = 56; AH = 60; D2 = 64
    mean, mbf, rden, var, rc = 68, 148, 149, 72, 73
    t0 = 74; CQ = 76
    QA0, QA1, QB0, QB1 = 96, 100, 104, 108
    CE, CH, mONE = 136, 140, 144
    XP = 152; G = 162; X = 172
    A(f"""
    v_mul_u32_u24 v{VX}, 1280, v{l15}
    v_lshl_add_u32 v{vxo}, v{g}, 3, v{VX}
    v_lshl_add_u32 v{VX}, v{g}, 4, v{VX}
    s_mul_i32 s40, s32, 81920
    s_mul_i32 s41, s34, 20480
    s_add_u32 s40, s40, s41
    s_add_u32 s41, s40, s35
    s_mov_b32 s14, 2621440
    s_waitcnt lgkmcnt(0)
    s_mov_b64 s[4:5], s[48:49]
    s_mov_b64 s[8:9], s[72:73]
    s_mov_b64 s[12:13], s[68:69]
    """)
    if PTS: A("s_memrealtime s[90:91]")
    for n in range(20):
        A(f"buffer_load_dwordx4 {vr(X+4*n,4)}, v{VX}, s[4:7], s40 offen offset:{n*64}")
    for i in range(5):
        A(f"buffer_load_dwordx2 {vr(XP+2*i,2)}, v{vxo}, s[4:7], s41 offen offset:{i*32}")
    if PTS: A("s_memrealtime s[92:93]")
    e_addrs(VE, VH, VHS, t0)
    t_addrs(VTa, VTb, t0)
    if PTS: A("s_waitcnt vmcnt(24)\ns_memrealtime s[86:87]\ns_waitcnt vmcnt(5)\ns_memrealtime s[88:89]")
    for j in range(4): A(f"v_mov_b32 v{D2+j}, 0")
    A(f"""
    v_mov_b32 v{mONE}, 0x3f803f80
    v_mov_b32 v{mONE+1}, 0x3f803f80
    v_mov_b32 v{mONE+2}, 0x3f803f80
    v_mov_b32 v{mONE+3}, 0x3f803f80
    s_lshl_b32 s42, s34, 2
    s_add_u32 s42, s42, {L_FLG+16}
    v_mov_b32 v14, s42
    v_mov_b32 v15, {L_FLG}
    s_barrier
    """)
    ts_mark(A, 1)
    def rdA(n):
        s = ES + 8 * (n % 4)
        A(f"""
        ds_read_b64_tr_b16 {vr(s,2)}, v{VE} offset:{n*1280}
        ds_read_b64_tr_b16 {vr(s+2,2)}, v{VE} offset:{n*1280+160}
        ds_read_b64_tr_b16 {vr(s+4,2)}, v{VH}
        ds_read_b64_tr_b16 {vr(s+6,2)}, v{VH} offset:160
        v_add_u32 v{VH}, v{VHS}, v{VH}
        """)
    for n in range(3): rdA(n)
    for n in range(20):
        s = ES + 8 * (n % 4); xb = X + 4 * n
        A(f"s_waitcnt lgkmcnt({min(8, 4*(19-n))})")
        mf16(CH, s + 4, mONE, n == 0)
        mf16(CE, s, mONE, n == 0)
        A(f"s_waitcnt vmcnt({24-n})")
        mf16(AH, s + 4, xb, n == 0)
        mf16(AE, s, xb, n == 0)
        if n + 3 < 20: rdA(n + 3)
        for j in range(4): A(f"v_dot2_f32_bf16 v{D2+j}, v{xb+j}, v{xb+j}, v{D2+j}")
    A(f"""
    v_add_f32 v{D2}, v{D2}, v{D2+1}
    v_add_f32 v{D2+2}, v{D2+2}, v{D2+3}
    v_add_f32 v{D2}, v{D2}, v{D2+2}
    v_mov_b32 v{D2+1}, v{D2}
    v_mov_b32 v{t0}, v{AH+1}
    v_mov_b32 v{mean}, v{AH+1}
    v_permlane16_swap_b32 v{D2}, v{D2+1}
    v_permlane16_swap_b32 v{t0}, v{mean}
    v_add_f32 v{D2}, v{D2}, v{D2+1}
    v_mov_b32 v{D2+1}, v{D2}
    v_mul_f32 v{mean}, {f32(1/640)}, v{mean}
    v_permlane32_swap_b32 v{D2}, v{D2+1}
    v_add_f32 v{D2}, v{D2}, v{D2+1}
    """)
    rbf(A, mbf, mean)
    A(f"""
    v_mul_f32 v{var}, {f32(1/640)}, v{D2}
    v_fma_f32 v{var}, -v{mean}, v{mean}, v{var}
    v_max_f32 v{var}, 0, v{var}
    """)
    rbf(A, var, var)
    A(f"v_add_f32 v{var}, {f32(1e-5)}, v{var}")
    rbf(A, var, var)
    A(f"v_sqrt_f32 v{var}, v{var}")
    rbf(A, var, var)
    A(f"""
    v_rcp_f32 v{rden}, v{var}
    s_cmp_ge_u32 s33, 2
    s_cbranch_scc1 KF_NOPROD
    """)
    q0 = t0; va = t0 + 8; vb = t0 + 9
    for r in range(4): A(f"v_fma_f32 v{q0+r}, -v{mbf}, v{CE+r}, v{AE+r}")
    for r in range(4): A(f"v_fma_f32 v{q0+4+r}, -v{mbf}, v{CH+r}, v{AH+r}")
    for r in range(8): A(f"v_mul_f32 v{q0+r}, v{q0+r}, v{rden}")
    A(f"""
    v_cvt_pk_bf16_f32 v{q0}, v{q0}, v{q0+1}
    v_cvt_pk_bf16_f32 v{q0+1}, v{q0+2}, v{q0+3}
    v_cvt_pk_bf16_f32 v{q0+2}, v{q0+4}, v{q0+5}
    v_cvt_pk_bf16_f32 v{q0+3}, v{q0+6}, v{q0+7}
    s_lshr_b32 s42, s34, 1
    s_mul_i32 s42, s42, {TB}
    s_add_u32 s42, s42, {L_STG}
    s_and_b32 s43, s34, 1
    s_cmp_eq_u32 s33, 1
    s_cbranch_scc1 KF_PV
    s_lshl_b32 s44, s43, 4
    v_add_u32 v{va}, s44, v{l15}
    v_lshrrev_b32 v{vb}, 1, v{g}
    v_and_b32 v{q0+4}, 1, v{g}
    v_lshl_add_u32 v{vb}, v{vb}, 5, v{va}
    v_lshlrev_b32 v{vb}, 4, v{vb}
    v_lshl_add_u32 v{vb}, v{q0+4}, 3, v{vb}
    v_add_u32 v{vb}, s42, v{vb}
    ds_write_b64 v{vb}, {vr(q0,2)}
    v_lshlrev_b32 v{va}, 3, v{va}
    v_add_u32 v{va}, s42, v{va}
    v_lshlrev_b32 v{q0+4}, 16, v{q0+2}
    v_ashrrev_i32 v{q0+5}, 31, v{q0+4}
    v_or_b32 v{q0+5}, 0x80000000, v{q0+5}
    v_xor_b32 v{q0+4}, v{q0+4}, v{q0+5}
    v_and_b32 v{q0+4}, 0xffff0000, v{q0+4}
    s_lshl_b32 s44, s32, 6
    s_lshl_b32 s45, s34, 4
    s_add_u32 s44, s44, s45
    s_sub_u32 s44, 0xffff, s44
    v_sub_u32 v{q0+5}, s44, v{l15}
    v_or_b32 v{q0+4}, v{q0+4}, v{q0+5}
    s_lshl_b32 s44, s34, 7
    s_add_u32 s44, s44, {L_REC}
    v_lshlrev_b32 v{vb}, 3, v{l15}
    v_add_u32 v{vb}, s44, v{vb}
    """)
    for sh in (8, 4, 2, 1):
        A(f"v_max_u32_dpp v{q0+4}, v{q0+4}, v{q0+4} row_ror:{sh} row_mask:0xf bank_mask:0xf")
    A(f"""
    s_lshl_b32 s44, s34, 2
    s_add_u32 s44, s44, {L_REC+512}
    v_mov_b32 v{q0+5}, s44
    ds_write_b64 v{vb}, {vr(mbf,2)}
    s_mov_b64 exec, 0xffff
    ds_write_b64 v{va}, {vr(q0+2,2)} offset:1024
    s_mov_b64 exec, 0x10000
    ds_write_b32 v{q0+5}, v{q0+4}
    s_mov_b64 exec, -1
    s_branch KF_NOPROD
    """)
    A.label("KF_PV")
    A(f"""
    s_mul_i32 s43, s43, 672
    s_add_u32 s42, s42, s43
    v_and_b32 v{va}, 3, v{l15}
    v_lshrrev_b32 v{vb}, 3, v{l15}
    v_lshl_add_u32 v{va}, v{vb}, 2, v{va}
    v_lshlrev_b32 v{va}, 1, v{va}
    v_bfe_u32 v{vb}, v{l15}, 2, 1
    v_mul_u32_u24 v{vb}, 336, v{vb}
    v_add3_u32 v{va}, v{va}, v{vb}, s42
    v_lshl_add_u32 v{vb}, v{g}, 6, v{va}
    v_mov_b32 v{q0+4}, 0x3f80
    ds_write_b16 v{vb}, v{q0} offset:1280
    ds_write_b16_d16_hi v{vb}, v{q0} offset:1296
    ds_write_b16 v{vb}, v{q0+1} offset:1312
    ds_write_b16_d16_hi v{vb}, v{q0+1} offset:1328
    s_mov_b64 exec, 0xffff
    ds_write_b16 v{va}, v{q0+2} offset:{1280+256}
    ds_write_b16_d16_hi v{va}, v{q0+2} offset:{1296+256}
    ds_write_b16 v{va}, v{q0+3} offset:{1312+256}
    ds_write_b16_d16_hi v{va}, v{q0+3} offset:{1328+256}
    ds_write_b16 v{va}, v{q0+4} offset:{1344+256}
    s_mov_b64 exec, -1
    """)
    A.label("KF_NOPROD")
    A(f"""
    ds_write_b32 v14, v{mONE}
    v_mul_f32 v{rc}, {f32(20**-0.5 * LOG2E)}, v{rden}
    """)
    ts_mark(A, 2)
    def lds_wait(tag, off, need):
        A.label(f"KF_LW{tag}")
        A(f"""
        ds_read_b128 {vr(D2,4)}, v15 offset:{off}
        s_waitcnt lgkmcnt(0)
        v_min3_u32 v{D2}, v{D2}, v{D2+1}, v{D2+2}
        v_readfirstlane_b32 s42, v{D2}
        s_cmp_ge_u32 s42, {need}
        s_cbranch_scc0 KF_LW{tag}
        """)
    TO = [(VTa, 0), (VTa, 8), (VTa, 80), (VTa, 88), (VTb, 0)]
    def slot(j): return (16 + 4 * (j % 10)) if j % 10 < 5 else (112 + 4 * (j % 10 - 5))
    PD = 7
    chk = {0: 2, 6: 4, 12: 6, 18: 7}
    infl = [0]
    def rd_tile(j):
        n, i = divmod(j, 5)
        if i == 0 and n in chk:
            lds_wait(str(n), 0, chk[n]); infl[0] = 0
        v, o = TO[i]
        if n == 10 and i in (0, 4): A(f"v_add_u32 v{v}, 51200, v{v}")
        o += (n % 10) * 5120
        A(f"ds_read_b64_tr_b16 {vr(slot(j),2)}, v{v} offset:{o}")
        A(f"ds_read_b64_tr_b16 {vr(slot(j)+2,2)}, v{v} offset:{o+2560}")
        infl[0] += 1
    for j in range(PD): rd_tile(j)
    issued = PD
    for j in range(100):
        n, i = divmod(j, 5)
        ahead = issued - 1 - j
        if infl[0] > ahead:
            A(f"s_waitcnt lgkmcnt({2*ahead})"); infl[0] = ahead
        mf16(ACC + 4*i, slot(j), X + 4*n, n == 0)
        mf16(CQ + 4*i, slot(j), mONE, n == 0)
        if issued < 100: rd_tile(issued); issued += 1
    A(f"""
    v_mov_b32 v{QB1}, 0
    v_mov_b32 v{QB1+1}, 0
    """)
    QD = [QA0, QA0+2, QB0, QB0+2, QA1]
    for i in range(5):
        for r in range(4): A(f"v_fma_f32 v{D2+r}, -v{mbf}, v{CQ+4*i+r}, v{ACC+4*i+r}")
        for r in range(4): A(f"v_mul_f32 v{D2+r}, v{D2+r}, v{rc}")
        A(f"""
        v_cvt_pk_bf16_f32 v{QD[i]}, v{D2}, v{D2+1}
        v_cvt_pk_bf16_f32 v{QD[i]+1}, v{D2+2}, v{D2+3}
        """)
    A(f"""
    v_permlane32_swap_b32 v{QA1}, v{QB1}
    v_permlane32_swap_b32 v{QA1+1}, v{QB1+1}
    """)
    SA, SB, OA, OB, PA, PB = 16, 32, 48, 64, 80, 88
    KB = [112, 120]; VB = [128, 136]
    vK0, vK1, vV = 144, 145, 146
    head, hh = 5, 6
    A(f"""
    v_and_b32 v{head}, 31, v{lane}
    v_lshrrev_b32 v{hh}, 5, v{lane}
    v_lshlrev_b32 v{vK0}, 4, v{lane}
    v_add_u32 v{vK0}, {L_RING}, v{vK0}
    v_lshlrev_b32 v{vK1}, 3, v{head}
    v_add_u32 v{vK1}, {L_RING+1024}, v{vK1}
    v_min_u32 v{vV}, 20, v{head}
    v_lshlrev_b32 v{vV}, 4, v{vV}
    v_mul_u32_u24 v7, 336, v{hh}
    v_add_u32 v7, {L_RING+1280}, v7
    v_add_u32 v{vV}, v{vV}, v7
    v_cmp_eq_u32 vcc, 0, v{hh}
    v_mov_b32 v7, 0x3f80
    v_cndmask_b32 v{KB[0]+6}, 0, v7, vcc
    v_cndmask_b32 v{KB[1]+6}, 0, v7, vcc
    """)
    for r in (KB[0]+7, KB[1]+7, QA1+2, QA1+3, QB1+2, QB1+3): A(f"v_mov_b32 v{r}, 0")
    for r in range(32): A(f"v_mov_b32 v{OA+r}, 0")
    for r in range(8): A(f"v_mov_b32 v{PB+r}, 0")
    for r in range(8): A(f"v_mov_b32 v{VB[1]+r}, 0")
    CW, FT, QN = 172, 180, 178
    if SWE:
        co = [-0.30488321185112, 0.22764499485492706, 0.0770670473575592] if SWE == 3 else [-0.3340390622615814, 0.32993242144584656]
        A(f"""
        s_setreg_imm32_b32 hwreg(HW_REG_MODE, 4, 2), 3
        v_mov_b32 v{CW}, {f32(co[-1])}
        v_mov_b32 v{CW+1}, {f32(co[-2])}
        v_mov_b32 v{CW+2}, {f32(co[0])}
        v_mov_b32 v{CW+4}, 0x80
        v_mov_b32 v{CW+5}, 0x3f80
        """)
        for d, (a0, a1) in ((FT, (QA0, QA1)), (FT+1, (QB0, QB1))):
            for j, r in enumerate([a0, a0+1, a0+2, a0+3, a1, a1+1]):
                A(f"v_dot2_f32_bf16 v{d}, v{r}, v{r}, {'0' if j == 0 else f'v{d}'}")
        A(f"""
        v_mov_b32 v{FT+2}, v{FT}
        v_mov_b32 v{FT+3}, v{FT+1}
        v_permlane32_swap_b32 v{FT}, v{FT+2}
        v_permlane32_swap_b32 v{FT+1}, v{FT+3}
        v_add_f32 v{FT}, v{FT}, v{FT+2}
        v_add_f32 v{FT+1}, v{FT+1}, v{FT+3}
        v_max_f32 v{QN}, v{FT}, v{FT+1}
        """)
    if not PTS: ts_mark(A, 3)
    A("s_barrier")
    if not PTS: ts_mark(A, 4)
    if CLK: A("s_memtime s[82:83]\ns_waitcnt lgkmcnt(0)")
    A(f"""
    ds_read_b128 {vr(KB[0],4)}, v{vK0}
    ds_read_b64 {vr(KB[0]+4,2)}, v{vK1}
    ds_read_b128 {vr(VB[0],4)}, v{vV}
    ds_read_b128 {vr(VB[0]+4,4)}, v{vV} offset:672
    s_mov_b32 s24, 0
    s_waitcnt lgkmcnt(2)
    """)
    mf(SA, KB[0], QA0); mf(SA, KB[0]+4, QA1, SA)
    mf(SB, KB[0], QB0); mf(SB, KB[0]+4, QB1, SB)
    def vmax16(t, S, init=None):
        if init is None:
            A(f"v_max3_f32 v{t}, v{S}, v{S+1}, v{S+2}")
            for r in range(3, 15, 2): A(f"v_max3_f32 v{t}, v{t}, v{S+r}, v{S+r+1}")
            A(f"v_max_f32 v{t}, v{t}, v{S+15}")
        else:
            for r in range(0, 16, 2): A(f"v_max3_f32 v{t}, v{t}, v{S+r}, v{S+r+1}")
    def swapmax(t, t2):
        A(f"""
        v_mov_b32 v{t2}, v{t}
        v_permlane32_swap_b32 v{t}, v{t2}
        v_max_f32 v{t}, v{t}, v{t2}
        """)
    vmax16(12, SA); swapmax(12, 13)
    A(f"v_cvt_pk_bf16_f32 v{QA1+2}, -v12, 0")
    mf(SA, KB[0], QA0); mf(SA, KB[0]+4, QA1, SA)
    vmax16(10, SB); swapmax(10, 11)
    A(f"v_cvt_pk_bf16_f32 v{QB1+2}, -v10, 0")
    A("s_waitcnt lgkmcnt(0)")
    A.label("KF_LOOP")
    def phase_sw(S, P, mfs, reads, pre=None, tail=None):
        if pre: A(pre)
        L = []
        for cp in range(16 // IL // 2):
            xs = [S + 2*(IL*cp + i) for i in range(IL)]
            Fs = [FT + 2*i for i in range(IL)]; Us = [FT + 2*IL + 2*i for i in range(IL)]
            for F, x in zip(Fs, xs): L += [f"v_fract_f32 v{F}, v{x}", f"v_fract_f32 v{F+1}, v{x+1}"]
            for F, U in zip(Fs, Us):
                L.append(f"v_pk_fma_f32 {p2(U)}, {p2(F)}, {p2(CW)}, {p2(CW)} op_sel:[0,0,1] op_sel_hi:[1,0,1]")
            if SWE == 3:
                for F, U in zip(Fs, Us):
                    L.append(f"v_pk_fma_f32 {p2(U)}, {p2(U)}, {p2(F)}, {p2(CW+2)} op_sel_hi:[1,1,0]")
            for F, U, x in zip(Fs, Us, xs):
                L.append(f"v_pk_fma_f32 {p2(x)}, {p2(U)}, {p2(F)}, {p2(x)}")
            for x in xs:
                L.append(f"v_pk_fma_f32 {p2(x)}, {p2(x)}, {p2(CW+4)}, {p2(CW+4)} op_sel:[0,0,1] op_sel_hi:[1,0,1] clamp")
            for x in xs:
                L.append(f"v_lshl_or_b32 v{P+(x-S)//2}, v{x+1}, 16, v{x}")
        q4 = len(L) // 4
        for i, x in enumerate(L):
            if i % q4 == 0 and i // q4 < 4: mfs[i // q4]()
            if i == 0: A(reads[0])
            if i == 1: A(reads[1])
            if i == len(L) - 1 and tail: A(tail)
            A(x)
    def phase(S, P, mfs, reads, pre=None, tail=None):
        if SWE: return phase_sw(S, P, mfs, reads, pre, tail)
        e = [f"v_exp_f32 v{S+r}, v{S+r}" for r in range(16)]
        c = [f"v_cvt_pk_bf16_f32 v{P+r}, v{S+2*r}, v{S+2*r+1}" for r in range(8)]
        if pre: A(pre)
        mfs[0]()
        A(reads[0])
        A(e[0]); A(reads[1])
        for x in e[1:4]: A(x)
        mfs[1]()
        for x in (e[4], e[5], c[0], e[6], c[1], e[7]): A(x)
        mfs[2]()
        for x in (e[8], e[9], c[2], e[10], c[3], e[11]): A(x)
        mfs[3]()
        for x in (e[12], e[13], c[4], e[14], c[5], c[6], e[15]): A(x)
        A(tail if tail else "s_nop 0")
        A(c[7])
    for t in range(16):
        p = t & 1; q = p ^ 1
        tn = (t + 1) % 16
        o = (tn // 8) * SLOT + (tn % 8) * TB
        pre = "s_barrier" if t % 8 == 7 else None
        phase(SA, PA,
              [lambda: mf(SB, KB[p], QB0), lambda: mf(SB, KB[p]+4, QB1, SB),
               lambda: mf(OB, VB[q], PB, OB), lambda: mf(OB, VB[q]+4, PB+4, OB)],
              [f"ds_read_b128 {vr(KB[q],4)}, v{vK0} offset:{o}",
               f"ds_read_b64 {vr(KB[q]+4,2)}, v{vK1} offset:{o}"], pre, "s_waitcnt lgkmcnt(0)")
        phase(SB, PB,
              [lambda: mf(SA, KB[q], QA0), lambda: mf(SA, KB[q]+4, QA1, SA),
               lambda: mf(OA, VB[p], PA, OA), lambda: mf(OA, VB[p]+4, PA+4, OA)],
              [f"ds_read_b128 {vr(VB[q],4)}, v{vV} offset:{o}",
               f"ds_read_b128 {vr(VB[q]+4,4)}, v{vV} offset:{o+672}"], None,
              "s_waitcnt lgkmcnt(0)" if t != 15 else "s_add_u32 s24, s24, 1")
    A(f"""
    s_cmp_lt_u32 s24, 4
    s_waitcnt lgkmcnt(0)
    s_cbranch_scc1 KF_LOOP
    ds_read_b64 v[10:11], v15 offset:32
    {f'ds_read_b128 {vr(FT,4)}, v15 offset:48' if SWE else ''}
    """)
    mf(OB, VB[1], PB, OB); mf(OB, VB[1]+4, PB+4, OB)
    if not PTS: ts_mark(A, 5)
    if CLK: A("s_memtime s[84:85]\ns_waitcnt lgkmcnt(0)")
    A(f"""
    s_mov_b32 s26, {f32(2.0**30)}
    s_mov_b32 s27, {f32(2.0**-30)}
    v_cmp_nlt_f32 s[42:43], v{OA+12}, s26
    v_cmp_ngt_f32 s[44:45], v{OA+12}, s27
    s_waitcnt lgkmcnt(0)
    v_readfirstlane_b32 s28, v10
    v_readfirstlane_b32 s29, v11
    v_cmp_nlt_f32 s[46:47], v{OB+12}, s26
    v_cmp_ngt_f32 s[76:77], v{OB+12}, s27
    s_or_b64 s[42:43], s[42:43], s[44:45]
    s_or_b64 s[46:47], s[46:47], s[76:77]
    """)
    if SWE: A(f"""
    v_max3_f32 v{FT}, v{FT}, v{FT+1}, v{FT+2}
    v_max_f32 v{FT}, v{FT}, v{FT+3}
    v_mul_f32 v{FT}, v{FT}, v{QN}
    s_mov_b32 s26, {f32(3600.0)}
    v_cmp_nlt_f32 s[44:45], v{FT}, s26
    s_or_b64 s[42:43], s[42:43], s[44:45]
    """)
    A(f"""
    s_or_b64 s[42:43], s[42:43], s[46:47]
    s_cbranch_scc1 KF_FB
    """)
    A.label("KF_STORE")
    PK = 136
    ACC3 = 16; T3 = 36; NS = 4; XF = 116; GF = 136; OF = X
    vL, vR, VT3, vF = 9, 10, 11, 12
    A(f"""
    v_rcp_f32 v12, v{OA+12}
    v_rcp_f32 v13, v{OB+12}
    s_lshl_b32 s42, s32, 2
    s_add_u32 s42, s42, s34
    s_mul_i32 s43, s42, 20480
    s_add_u32 s43, s43, {F_O}
    s_lshl_b32 s44, s33, 11
    s_add_u32 s44, s44, s43
    s_lshl_b32 s45, s33, 9
    s_add_u32 s45, s45, s43
    s_add_u32 s45, s45, 16384
    s_lshl_b32 s42, s42, 7
    s_add_u32 s42, s42, {F_OF}
    s_lshl_b32 s46, s33, 2
    s_add_u32 s46, s46, s42
    v_lshlrev_b32 v{vL}, 4, v{lane}
    v_lshl_add_u32 v{vR}, v{hh}, 30, v{vL}
    """)
    for O, rr, d0, d1 in ((OA, 12, PK, PK+8), (OB, 13, PK+4, PK+10)):
        for r in range(12): A(f"v_mul_f32 v{O+r}, v{O+r}, v{rr}")
        for r in range(4): A(f"v_cvt_pk_bf16_f32 v{d0+r}, v{O+2*r}, v{O+2*r+1}")
        for r in range(2): A(f"v_cvt_pk_bf16_f32 v{d1+r}, v{O+8+2*r}, v{O+9+2*r}")
    A(f"""
    v_lshrrev_b32 v{VT3}, 2, v{lane}
    v_mul_u32_u24 v{VT3}, 160, v{VT3}
    v_and_b32 v13, 3, v{lane}
    v_lshl_add_u32 v{VT3}, v13, 3, v{VT3}
    v_mov_b32 v13, 0
    v_mov_b32 v14, 1
    s_lshl_b32 s78, s33, 11
    """)
    if ROT:
        for r in range(8): A(f"v_mov_b32 v{OF+r}, v{PK+r}")
    A(f"""
    s_cmp_eq_u32 s28, 1
    s_cbranch_scc1 KF_FAST
    """)
    if os.environ.get('SLOWSLEEP'):
        for _ in range(20): A("s_sleep 127")
    def rd3(n):
        if P3H: return
        b = T3 + 20 * (n % NS)
        if ROT:
            if n < 16:
                A(f"""
                s_add_u32 s76, s78, {n*1024}
                s_and_b32 s76, s76, 0x3fff
                s_mul_i32 s76, s76, 5
                v_add_u32 v15, s76, v{VT3}
                """)
            elif n == 16: A(f"v_add_u32 v15, 81920, v{VT3}")
            for i in range(5):
                o = max(n - 16, 0) * 5120 + i * 32
                A(f"ds_read_b64_tr_b16 {vr(b+4*i,2)}, v15 offset:{o}")
                A(f"ds_read_b64_tr_b16 {vr(b+4*i+2,2)}, v15 offset:{o+2560}")
            return
        if n == 10: A(f"v_add_u32 v{VT3}, 51200, v{VT3}")
        for i in range(5):
            o = (n % 10) * 5120 + i * 32
            A(f"ds_read_b64_tr_b16 {vr(b+4*i,2)}, v{VT3} offset:{o}")
            A(f"ds_read_b64_tr_b16 {vr(b+4*i+2,2)}, v{VT3} offset:{o+2560}")
    for sc in (" sc1", ""):
        A(f"""
        buffer_store_dwordx4 {vr(PK,4)}, v{vL}, s[8:11], s44 offen{sc}
        buffer_store_dwordx4 {vr(PK+4,4)}, v{vL}, s[8:11], s44 offen offset:1024{sc}
        buffer_store_dwordx4 {vr(PK+8,4)}, v{vR}, s[8:11], s45 offen{sc}
        """)
        rd3(0)
        A(f"""
        s_waitcnt vmcnt(0)
        s_mov_b64 exec, 1
        buffer_store_dword v14, v13, s[8:11], s46 offen{sc}
        s_mov_b64 exec, -1
        """)
        if sc:
            A("s_branch KF_P3")
            A.label("KF_FAST")
    A.label("KF_P3")
    A(f"""
    v_and_b32 v{vF}, 7, v{lane}
    v_lshlrev_b32 v{vF}, 2, v{vF}
    s_mov_b32 s47, {TIMEOUT}
    v_min_u32 v252, 4, v{lane}
    v_lshlrev_b32 v252, 12, v252
    {f'buffer_load_dword v{OF+79}, v252, s[8:11], s43 offen sc1' if PT else ''}
    {'' if P3H else f'buffer_load_dword v13, v{vF}, s[8:11], s42 offen sc1'}
    s_waitcnt lgkmcnt(5)
    """)
    rd3(1)
    for i in range(10): unpack(XF + 2*i, XP + i)
    A("s_waitcnt lgkmcnt(5)")
    rd3(2)
    CST = 16
    A(f"""
    v_mov_b32 v{CST}, {f32(-LOG2E)}
    v_mov_b32 v{CST+1}, 1.0
    """)
    for i in range(10):
        b = 18 + 4 * (i & 1)
        gpair(CST, XF + 2*i, mbf, G + i, b, b + 2)
    A(f"""
    s_lshr_b32 s44, s29, 4
    s_lshl_b32 s45, s32, 2
    s_add_u32 s45, s45, s34
    s_cmp_eq_u32 s44, s45
    s_cbranch_scc0 KF_NSP
    v_lshlrev_b32 v14, 3, v{g}
    v_add_u32 v14, {L_G2}, v14
    s_and_b32 s44, s29, 15
    v_cmp_eq_u32 vcc, s44, v{l15}
    s_waitcnt lgkmcnt(0)
    """)
    for i in range(5): A(f"ds_read_b64 {vr(GF+2*i,2)}, v14 offset:{i*32}")
    A("s_waitcnt lgkmcnt(0)")
    for i in range(10): A(f"v_cndmask_b32 v{G+i}, v{G+i}, v{GF+i}, vcc")
    A.label("KF_NSP")
    A("s_waitcnt lgkmcnt(5)")
    rd3(3)
    for i in range(10): unpack(GF + 2*i, G + i)
    if P3H:
        A(f"""
        s_mul_i32 s44, s34, 5120
        v_add_u32 v{vR}, s44, v{vL}
        v_add_u32 v{VT3}, 40960, v{vR}
        s_barrier
        """)
        if not PTS: ts_mark(A, 6)
        def rdp(i):
            for h in range(4):
                A(f"ds_read_b128 {vr(T3+(h*5+i)*4,4)}, v{vR if h < 2 else VT3} offset:{L_W + (h&1)*20480 + i*1024}")
        for i in range(3): rdp(i)
    else:
        A.label("KF_POLL3")
        A(f"""
        s_waitcnt vmcnt(0)
        v_cmp_ne_u32 vcc, 0, v13
        s_sub_u32 s47, s47, 1
        s_cbranch_scc1 KF_GO3
        s_cmp_eq_u64 vcc, -1
        s_cbranch_scc1 KF_GO3
        buffer_load_dword v13, v{vF}, s[8:11], s42 offen sc1
        s_branch KF_POLL3
        """)
        A.label("KF_GO3")
        if not PTS: ts_mark(A, 6)
        A.label("KF_GO3X")
        for n in range(20):
            if ROT:
                if n < 2: continue
                if n < 16:
                    A(f"""
                    s_add_u32 s77, s78, {n*1024}
                    s_and_b32 s77, s77, 0x3fff
                    s_add_u32 s77, s77, s43
                    """)
                elif n == 16: A("s_add_u32 s77, s43, 16384")
                A(f"buffer_load_dwordx4 {vr(OF+4*n,4)}, v{vL}, s[8:11], s77 offen offset:{max(n-16,0)*1024}{' sc1' if PT else ''}")
                continue
            if n % 4 == 0 and n: A(f"s_add_u32 s43, s43, 4096")
            A(f"buffer_load_dwordx4 {vr(OF+4*n,4)}, v{vL}, s[8:11], s43 offen offset:{(n%4)*1024}")
        for n in range(20):
            b = T3 + 20 * (n % NS)
            w = f"s_waitcnt vmcnt({19-n})"
            if n == 0: w += " lgkmcnt(0)"
            elif n + NS - 1 < 20: w += " lgkmcnt(5)"
            elif n == 17: w += " lgkmcnt(10)"
            elif n == 18: w += " lgkmcnt(0)"
            A(w)
            if os.environ.get('P3T') and n in (2, 10, 19): A(f"s_memrealtime s[{80+2*{2:1,10:2,19:3}[n]}:{81+2*{2:1,10:2,19:3}[n]}]")
            if HD: A(f"s_cbranch_execz KF_HS{n}")
            for i in range(5): mf16(ACC3 + 4*i, b + 4*i, OF + 4*n, n == 0)
            if HD: A.label(f"KF_HS{n}")
            if n + NS < 20: rd3(n + NS)
        if HD: A("s_cbranch_execz KF_END")
    for i in range(5):
        if P3H:
            A(f"s_waitcnt lgkmcnt({[8, 8, 8, 4, 0][i]})")
            if i < 2: rdp(i + 3)
            for h in range(2):
                a = ACC3 + 4*i + 2*h; q = T3 + 4*i + 2*h
                A(f"v_pk_add_f32 {p2(a)}, {p2(q)}, {p2(q+20)}")
                A(f"v_pk_add_f32 {p2(q+40)}, {p2(q+40)}, {p2(q+60)}")
            for h in range(2):
                a = ACC3 + 4*i + 2*h; q = T3 + 4*i + 2*h
                A(f"v_pk_add_f32 {p2(a)}, {p2(a)}, {p2(q+40)}")
        for h in range(2):
            a = ACC3 + 4*i + 2*h; j = 2*i + h
            A(f"v_cvt_pk_bf16_f32 v{a}, v{a}, v{a+1}")
            unpack(a, a)
            A(f"v_pk_mul_f32 {p2(a)}, {p2(a)}, {p2(GF+2*j)}")
            A(f"v_cvt_pk_bf16_f32 v{a}, v{a}, v{a+1}")
            unpack(a, a)
            A(f"v_pk_add_f32 {p2(a)}, {p2(a)}, {p2(XF+2*j)}")
            A(f"v_cvt_pk_bf16_f32 v{T3+j}, v{a}, v{a+1}")
        A(f"buffer_store_dwordx2 {vr(T3+2*i,2)}, v{vxo}, s[12:15], s41 offen offset:{i*32}")
    ts_end(A, 8)
    A("s_endpgm")
    A.label("KF_FB")
    A(f"""
    v_mov_b32 v{QA1+2}, 0
    v_mov_b32 v{QB1+2}, 0
    v_mov_b32 v12, 0xff800000
    v_mov_b32 v10, 0xff800000
    v_subrev_u32 v{vK0}, {L_RING}, v{vK0}
    v_subrev_u32 v{vK1}, {L_RING}, v{vK1}
    v_subrev_u32 v{vV}, {L_RING}, v{vV}
    s_mov_b32 s42, {F_KV}
    """)
    A.label("KF_FB1")
    A(f"""
    buffer_load_dwordx4 {vr(KB[0],4)}, v{vK0}, s[8:11], s42 offen
    buffer_load_dwordx2 {vr(KB[0]+4,2)}, v{vK1}, s[8:11], s42 offen
    s_add_u32 s42, s42, {TB}
    s_waitcnt vmcnt(0)
    """)
    mf(SA, KB[0], QA0); mf(SA, KB[0]+4, QA1, SA)
    mf(SB, KB[0], QB0); mf(SB, KB[0]+4, QB1, SB)
    vmax16(12, SA, 1); vmax16(10, SB, 1)
    A(f"""
    s_cmp_lt_u32 s42, {F_KV + 64*TB}
    s_cbranch_scc1 KF_FB1
    """)
    swapmax(12, 13); swapmax(10, 11)
    for r in range(32): A(f"v_mov_b32 v{OA+r}, 0")
    A(f"s_mov_b32 s42, {F_KV}")
    A.label("KF_FB2")
    A(f"""
    buffer_load_dwordx4 {vr(KB[0],4)}, v{vK0}, s[8:11], s42 offen
    buffer_load_dwordx2 {vr(KB[0]+4,2)}, v{vK1}, s[8:11], s42 offen
    buffer_load_dwordx4 {vr(VB[0],4)}, v{vV}, s[8:11], s42 offen
    buffer_load_dwordx4 {vr(VB[0]+4,4)}, v{vV}, s[8:11], s42 offen offset:672
    s_add_u32 s42, s42, {TB}
    s_waitcnt vmcnt(0)
    """)
    mf(SA, KB[0], QA0); mf(SA, KB[0]+4, QA1, SA)
    mf(SB, KB[0], QB0); mf(SB, KB[0]+4, QB1, SB)
    for S, P, m, O in ((SA, PA, 12, OA), (SB, PB, 10, OB)):
        for r in range(16): A(f"v_sub_f32 v{S+r}, v{S+r}, v{m}")
        for r in range(16): A(f"v_exp_f32 v{S+r}, v{S+r}")
        for r in range(8): A(f"v_cvt_pk_bf16_f32 v{P+r}, v{S+2*r}, v{S+2*r+1}")
        mf(O, VB[0], P, O); mf(O, VB[0]+4, P+4, O)
    A(f"""
    s_cmp_lt_u32 s42, {F_KV + 64*TB}
    s_cbranch_scc1 KF_FB2
    s_branch KF_STORE
    """)
    VW = 16
    hF = 12
    ht = 68
    vL16, vL4 = 98, 99
    WRr = 16; SG = 24
    A.label("KF_HELP")
    A(f"""
    v_lshlrev_b32 v{vL16}, 4, v{lane}
    v_lshlrev_b32 v{vL4}, 2, v{lane}
    s_mov_b32 s22, 25600
    s_mov_b32 s26, 256
    s_mov_b32 s27, 0x20000
    s_mov_b32 s30, 1280
    s_mov_b32 s31, 0x20000
    s_lshl_b32 s40, s34, 10
    s_bitcmp1_b32 s33, 0
    s_waitcnt lgkmcnt(0)
    s_cselect_b64 s[20:21], s[54:55], s[52:53]
    s_mov_b64 s[28:29], s[60:61]
    s_mov_b64 s[24:25], s[70:71]
    s_mov_b64 s[16:17], s[50:51]
    s_mov_b64 s[8:9], s[72:73]
    s_mov_b64 s[4:5], s[48:49]
    """)
    if PTS: A("s_memrealtime s[90:91]")
    A(f"""
    s_cmp_lg_u32 s34, 3
    s_cbranch_scc1 KF_HE
    """)
    if NON:
        A(f"""
        s_cmp_lg_u32 s2, 0
        s_cbranch_scc1 KF_NN
        s_memrealtime s[76:77]
        v_mov_b32 v46, 0
        s_waitcnt lgkmcnt(0)
        s_or_b32 s77, s77, 0x80000000
        v_mov_b32 v44, s76
        v_mov_b32 v45, s77
        s_mov_b64 exec, 1
        buffer_store_dwordx2 v[44:45], v46, s[24:27], 0 offen sc1
        s_mov_b64 exec, -1
        s_waitcnt vmcnt(0)
        """)
        A.label("KF_NN")
    for i in range(5): A(f"buffer_load_dword v{WRr+i}, v{vL4}, s[28:31], 0 offen offset:{i*256}")
    A.label("KF_HE")
    A(f"""
    s_cmp_ge_u32 s33, 2
    s_cbranch_scc1 KF_HNE
    """)
    for i in range(7):
        A(f"""
        s_add_u32 m0, s40, {L_E + i*4096}
        s_add_u32 s41, s40, {i*4096}
        buffer_load_dwordx4 v{vL16}, s[20:23], s41 offen lds
        """)
    A.label("KF_HNE")
    if PTS: A("s_memrealtime s[92:93]")
    A(f"""
    s_cmp_eq_u32 s34, 3
    s_cbranch_scc1 KF_H3
    """)
    dma_pat(A, [(VW, 8, 16, 4, 0)], lane, ht, 35)
    GUV = 140
    A(f"""
    v_mul_u32_u24 v9, 3456, v{lane}
    s_mul_i32 s38, s36, 27
    s_add_u32 s38, s38, s37
    s_lshl_b32 s79, s38, 4
    s_cmp_lt_u32 s37, 27
    s_cselect_b32 s14, {640*3456}, 0
    s_mov_b64 s[12:13], s[62:63]
    """)
    def gu(j):
        if j == 3: A("s_cmp_eq_u32 s34, 0\ns_cselect_b64 s[12:13], s[62:63], s[64:65]")
        if j == 4: A("s_mov_b64 s[12:13], s[64:65]")
        A(f"""
        s_add_u32 s78, s34, {3*j}
        s_min_u32 s78, s78, 19
        s_sub_u32 s76, s78, 10
        s_cselect_b32 s76, s78, s76
        s_mul_i32 s76, s76, {64*3456}
        s_add_u32 s76, s76, s79
        buffer_load_dwordx4 {vr(GUV+4*j,4)}, v9, s[12:15], s76 offen
        """)
    for j in range(GE): gu(j)
    A(f"""
    s_mul_i32 s40, s34, 40960
    s_mul_i32 s41, s34, 5120
    s_lshl_b32 s42, s34, 2
    s_add_u32 s42, s42, {L_FLG}
    v_mov_b32 v{hF}, s42
    s_waitcnt vmcnt({GE})
    s_barrier
    """)
    for i in range(7):
        if i == 6:
            A(f"""
            s_min_u32 s40, s40, {19*40960}
            s_min_u32 s41, s41, {19*5120}
            """)
        for j in range(5):
            A(f"""
            s_add_u32 m0, s41, {j*1024}
            s_nop 0
            buffer_load_dwordx4 v{VW+j}, s[16:19], s40 offen lds
            """)
        A(f"""
        s_add_u32 s40, s40, {3*40960}
        s_add_u32 s41, s41, {3*5120}
        """)
        if WSP and i == WSP - 1:
            A(f"v_mov_b32 v14, {L_FLG}")
            A.label("KF_WSW")
            A(f"""
            ds_read_b32 v13, v14 offset:44
            s_waitcnt lgkmcnt(0)
            v_readfirstlane_b32 s43, v13
            s_cmp_lg_u32 s43, 0
            s_cbranch_scc1 KF_WSG
            s_sleep 1
            s_branch KF_WSW
            """)
            A.label("KF_WSG")
    ts_mark(A, 1)
    for i in (1, 3, 5, 6):
        A(f"""
        v_mov_b32 v{ht}, {i+1}
        s_waitcnt vmcnt({5*(6-i)})
        ds_write_b32 v{hF}, v{ht}
        """)
    ts_mark(A, 2)
    A(f"v_mov_b32 v14, {L_FLG}")
    A.label("KF_PDW")
    A(f"""
    ds_read_b32 v13, v14 offset:40
    s_waitcnt lgkmcnt(0)
    v_readfirstlane_b32 s43, v13
    s_cmp_lg_u32 s43, 0
    s_cbranch_scc1 KF_PDG
    s_sleep 2
    s_branch KF_PDW
    """)
    A.label("KF_PDG")
    for j in range(GE, GS[0]): gu(j)
    A("s_branch KF_HJ")
    A.label("KF_H3")
    A(f"""
    v_mov_b32 v28, 0
    v_mov_b32 v29, 0
    v_mov_b32 v30, 0
    v_mov_b32 v31, 0
    v_mov_b32 v14, {L_FLG}
    ds_write_b128 v14, v[28:31]
    ds_write_b128 v14, v[28:31] offset:16
    s_cmp_ge_u32 s33, 2
    s_cselect_b32 s40, 1, 0
    v_mov_b32 v11, s40
    ds_write_b32 v14, v11 offset:40
    ds_write_b32 v14, v11 offset:44
    v_lshrrev_b32 v7, 4, v{lane}
    v_mul_u32_u24 v7, 320, v7
    v_bfe_u32 v8, v{lane}, 1, 1
    v_mul_u32_u24 v8, 160, v8
    v_add_u32 v7, v8, v7
    v_bfe_u32 v8, v{lane}, 2, 2
    v_lshl_add_u32 v7, v8, 5, v7
    v_and_b32 v8, 1, v{lane}
    v_lshl_add_u32 v7, v8, 4, v7
    v_add_u32 v7, {L_ASI}, v7
    v_lshlrev_b32 v40, 3, v{lane}
    s_cmp_eq_u32 s33, 0
    s_cselect_b32 s40, 0, 0x40000000
    s_cselect_b32 s41, 8, 0
    v_add_u32 v40, s40, v40
    v_cmp_gt_u32 vcc, s41, v{lane}
    v_mov_b32 v41, 0x40000000
    v_cndmask_b32 v41, v41, v{vL4}, vcc
    s_lshl_b32 s44, s32, 9
    s_add_u32 s44, s44, {F_OF}
    s_lshl_b32 s45, s32, 5
    s_add_u32 s45, s45, {F_YF}
    s_cmp_ge_u32 s33, 2
    s_cbranch_scc0 KF_H3W
    s_waitcnt vmcnt(0)
    """)
    A.label("KF_H3W")
    A("s_waitcnt vmcnt(7)")
    if NON: A("v_mov_b32 v46, 0\nbuffer_load_dwordx2 v[44:45], v46, s[24:27], 0 offen sc1")
    for i in range(5):
        b = 32 + 4 * (i % 2)
        A(f"""
        v_and_b32 v{b}, 0xffff, v{WRr+i}
        v_or_b32 v{b}, 0x3f800000, v{b}
        v_mov_b32 v{b+1}, 0
        v_lshrrev_b32 v{b+2}, 16, v{WRr+i}
        v_or_b32 v{b+2}, 0x3f800000, v{b+2}
        v_mov_b32 v{b+3}, 0
        ds_write_b128 v7, {vr(b,4)} offset:{i*1280}
        """)
    A(f"""
    s_mul_i32 s40, s33, 1280
    s_add_u32 s41, s40, {L_STG}
    v_add_u32 v7, s41, v{vL16}
    s_mul_i32 s41, s32, {2*TB}
    s_add_u32 s40, s40, s41
    s_add_u32 s40, s40, {F_KV}
    s_cmp_eq_u32 s33, 0
    s_cselect_b32 s41, 16, 20
    s_cselect_b32 s42, 33, 0
    v_mov_b32 v10, 0x40000000
    v_cmp_gt_u32 vcc, s41, v{lane}
    v_cndmask_b32 v8, v10, v{vL16}, vcc
    v_cmp_gt_u32 vcc, s42, v{lane}
    v_cndmask_b32 v9, v10, v{vL16}, vcc
    v_add_u32 v10, {L_REC}, v{vL16}
    s_mul_i32 s41, s32, 640
    s_add_u32 s41, s41, {F_REC}
    s_lshl_b32 s42, s32, {8 if NON else 3}
    s_lshl_b32 s43, s33, {7 if NON else 2}
    s_add_u32 s42, s42, s43
    s_add_u32 s42, s42, {F_FL if NON else 0}
    v_mov_b32 v11, 1
    v_mov_b32 v12, 0
    v_lshlrev_b32 v46, 3, v{lane}
    v_lshlrev_b32 v47, 7, v{lane}
    s_mov_b32 s47, {TIMEOUT}
    s_waitcnt vmcnt(0) lgkmcnt(0)
    s_barrier
    """)
    if NON:
        A.label("KF_NW")
        A(f"""
        v_readfirstlane_b32 s76, v44
        v_readfirstlane_b32 s77, v45
        s_cmp_lg_u32 s77, 0
        s_cbranch_scc1 KF_NOK
        buffer_load_dwordx2 v[44:45], v12, s[24:27], 0 offen sc1
        s_sub_u32 s47, s47, 1
        s_cbranch_scc1 KF_NTO
        s_waitcnt vmcnt(0)
        s_branch KF_NW
        """)
        A.label("KF_NTO")
        A("s_waitcnt vmcnt(0)\ns_mov_b32 s47, 0")
        A.label("KF_NOK")
    A(f"""
    s_cmp_ge_u32 s33, 2
    s_cbranch_scc1 KF_POLL0
    buffer_store_dwordx2 v[28:29], v40, s[8:11], s44 offen sc1
    buffer_store_dword v28, v41, s[8:11], s45 offen sc1
    """)
    A.label("KF_PUBW")
    A(f"""
    ds_read_b128 v[28:31], v14 offset:16
    s_waitcnt lgkmcnt(0)
    v_min3_u32 v28, v28, v29, v30
    v_min_u32 v28, v28, v31
    v_readfirstlane_b32 s43, v28
    s_cmp_eq_u32 s43, 0
    s_cbranch_scc1 KF_PUBW
    """)
    ts_mark(A, 1)
    A(f"""
    ds_read_b128 {vr(SG,4)}, v7
    ds_read_b128 {vr(SG+4,4)}, v7 offset:1024
    ds_read_b128 {vr(SG+8,4)}, v7 offset:{TB}
    ds_read_b128 {vr(SG+12,4)}, v7 offset:{TB+1024}
    ds_read_b128 {vr(SG+16,4)}, v10
    s_waitcnt lgkmcnt(4)
    buffer_store_dwordx4 {vr(SG,4)}, v{vL16}, s[8:11], s40 offen sc1
    s_waitcnt lgkmcnt(3)
    buffer_store_dwordx4 {vr(SG+4,4)}, v8, s[8:11], s40 offen offset:1024 sc1
    s_waitcnt lgkmcnt(2)
    buffer_store_dwordx4 {vr(SG+8,4)}, v{vL16}, s[8:11], s40 offen offset:{TB} sc1
    s_waitcnt lgkmcnt(1)
    buffer_store_dwordx4 {vr(SG+12,4)}, v8, s[8:11], s40 offen offset:{TB+1024} sc1
    s_waitcnt lgkmcnt(0)
    buffer_store_dwordx4 {vr(SG+16,4)}, v9, s[8:11], s41 offen sc1
    ds_write_b32 v14, v11 offset:44
    s_waitcnt vmcnt(0)
    s_mov_b64 exec, {'0xff' if NON else '1'}
    {'buffer_store_dwordx2 v[44:45], v46, s[8:11], s42 offen sc1' if NON else 'buffer_store_dword v11, v12, s[24:27], s42 offen sc1'}
    s_mov_b64 exec, -1
    ds_write_b32 v14, v11 offset:40
    """)
    ts_mark(A, 2)
    A.label("KF_POLL0")
    if PW:
        A(f"""
        ds_read_b128 v[28:31], v14
        s_waitcnt lgkmcnt(0)
        v_min3_u32 v28, v28, v29, v30
        v_readfirstlane_b32 s43, v28
        s_cmp_ge_u32 s43, {PW}
        s_cbranch_scc1 KF_POLL1P
        s_sleep 1
        s_branch KF_POLL0
        """)
    A.label("KF_POLL1P")
    A(f"s_mov_b32 s43, {F_FL}")
    A.label("KF_POLL1")
    A(f"""
    {'buffer_load_dwordx2 v[48:49], v47, s[8:11], s43 offen sc1' if NON else f'buffer_load_dword v13, v{vL4}, s[24:27], 0 offen sc1'}
    s_sub_u32 s47, s47, 1
    s_cbranch_scc1 KF_GO1
    s_waitcnt vmcnt(0)
    {'v_cmp_eq_u64 vcc, s[76:77], v[48:49]' if NON else 'v_cmp_ne_u32 vcc, 0, v13'}
    s_cmp_eq_u64 vcc, exec
    s_cbranch_scc1 KF_GO1
    """)
    if PSLEEP: A(f"s_sleep {PSLEEP}")
    A("s_branch KF_POLL1")
    A.label("KF_GO1")
    A("s_mov_b64 exec, -1")
    ts_mark(A, 3)
    for gi in range(2):
        A(f"""
        s_add_u32 s43, s36, {gi}
        s_and_b32 s43, s43, 7
        s_mul_i32 s43, s43, {SLOT}
        """)
        for i in range(21):
            if i % 4 == 0:
                A(f"""
                s_mov_b32 m0, {L_RING + gi*SLOT + i*1024}
                s_add_u32 s42, s43, {F_KV + i*1024}
                """)
            A(f"buffer_load_dwordx4 v{vL16}, s[8:11], s42 offen offset:{(i%4)*1024} lds")
    A("s_waitcnt vmcnt(21)")
    KEY = 4; XFh = 16; WD = 40; BF = 56; hACC = 64; ST = 68; TT = 72; Y = 84
    vL8, vGU, vX, vTR, vP = 8, 9, 11, 12, 13
    hl15, hg = 14, 15
    P1, P2 = 88, 93
    YL = 128; SP = 200; hCST = 126
    A.label("KF_HJ")
    dma_pat(A, [(P1, 20, 4, 8, 0), (P2, 20, 80, 40, 16)], lane, 100, 35)
    A(f"""
    v_lshlrev_b32 v{vL8}, 3, v{lane}
    v_lshrrev_b32 v5, 1, v{lane}
    v_mul_u32_u24 v5, 640, v5
    v_and_b32 v6, 1, v{lane}
    v_lshl_add_u32 v5, v6, 3, v5
    v_mul_u32_u24 v{vGU}, 3456, v{lane}
    v_mov_b32 v{hl15}, v{l15}
    v_mov_b32 v{hg}, v{g}
    v_lshlrev_b32 v{vX}, 4, v{g}
    s_mul_i32 s38, s36, 27
    s_add_u32 s38, s38, s37
    s_mul_i32 s39, s36, 5
    s_add_u32 s39, s39, s37
    s_add_u32 s39, s39, {216-27}
    s_cmp_lt_u32 s37, 27
    s_cselect_b32 s39, s38, s39
    s_cselect_b32 s14, {640*3456}, 0
    s_cselect_b32 s22, {1728*1280}, 0
    s_mov_b64 s[20:21], s[66:67]
    s_mov_b64 s[16:17], s[56:57]
    s_mul_i32 s46, s34, 5376
    s_mov_b32 s43, {F_REC+512}
    s_barrier
    """)
    ts_mark(A, 4)
    A(f"""
    buffer_load_dwordx2 {vr(KEY,2)}, v5, s[8:11], s43 offen
    s_mul_i32 s26, s38, 10240
    s_mul_i32 s27, s34, 320
    s_add_u32 s26, s26, s27
    s_add_u32 s28, s26, 5120
    """)
    for f in range(8):
        A(f"buffer_load_dwordx2 {vr(WD+2*f,2)}, v{vL8}, s[20:23], s{26 if f < 4 else 28} offen offset:{(f%4)*1280}")
    def wo_block(blk0, pat):
        if pat == P1:
            A(f"""
            s_add_u32 s76, s34, {blk0}
            s_mul_i32 s77, s76, 51200
            s_mul_i32 s76, s76, 5120
            """)
        else:
            A(f"""
            s_mul_i32 s77, s34, 204800
            s_add_u32 s76, s34, {blk0}
            s_mul_i32 s76, s76, 5120
            """)
        for j in range(5):
            A(f"""
            s_add_u32 m0, s76, {j*1024}
            s_nop 0
            buffer_load_dwordx4 v{pat+j}, s[16:19], s77 offen lds
            """)
    A(f"""
    v_mov_b32 v6, 0
    s_cmp_eq_u32 s34, 3
    s_cbranch_scc1 KF_NGW
    """)
    for j in range(GS[0], GS[1]): gu(j)
    A(f"""
    s_waitcnt vmcnt({8+GS[1]-GS[0]})
    s_branch KF_NGW2
    """)
    A.label("KF_NGW")
    A("s_waitcnt vmcnt(8)")
    A.label("KF_NGW2")
    A(f"""
    v_max_u32 v{KEY}, v{KEY}, v{KEY+1}
    """)
    for sh in (8, 4, 2, 1):
        A(f"v_max_u32_dpp v{KEY}, v{KEY}, v{KEY} row_ror:{sh} row_mask:0xf bank_mask:0xf")
    A(f"""
    v_mov_b32 v{KEY+1}, v{KEY}
    v_permlane16_swap_b32 v{KEY}, v{KEY+1}
    v_max_u32 v{KEY}, v{KEY}, v{KEY+1}
    v_mov_b32 v{KEY+1}, v{KEY}
    v_permlane32_swap_b32 v{KEY}, v{KEY+1}
    v_max_u32 v{KEY}, v{KEY}, v{KEY+1}
    v_readfirstlane_b32 s44, v{KEY}
    s_andn2_b32 s45, 0x7ff, s44
    s_mul_i32 s40, s45, 1280
    s_add_u32 s41, s40, s27
    s_lshr_b32 s42, s45, 6
    s_mul_i32 s43, s42, 640
    s_and_b32 s47, s45, 63
    s_lshl_b32 s47, s47, 3
    s_add_u32 s43, s43, s47
    s_add_u32 s43, s43, {F_REC}
    """)
    for i in range(5):
        A(f"buffer_load_dwordx4 {vr(XFh+4*i,4)}, v{vX}, s[4:7], s41 offen offset:{i*64}")
    A(f"buffer_load_dwordx2 {vr(ST,2)}, v6, s[8:11], s43 offen")
    KN, KT, vKa, vKb = 220, 224, 222, 223
    def knorm(gi):
        if not SWE: return
        o = (gi & 1) * SLOT
        A(f"""
        ds_read_b128 {vr(KT,4)}, v{vKa} offset:{o}
        ds_read_b64 {vr(KT+4,2)}, v{vKb} offset:{o+1024}
        ds_read_b128 {vr(KT+6,4)}, v{vKa} offset:{o+TB}
        ds_read_b64 {vr(KT+10,2)}, v{vKb} offset:{o+TB+1024}
        s_waitcnt lgkmcnt(0)
        """)
        for b in (KT, KT+6):
            for j in range(6):
                A(f"v_dot2_f32_bf16 v{KN+1}, v{b+j}, v{b+j}, {'0' if j == 0 else f'v{KN+1}'}")
            A(f"v_max_f32 v{KN}, v{KN}, v{KN+1}")
    def gts(n):
        if GTS and TS: A(f"s_memrealtime s[{80+2*n}:{81+2*n}]")
    def ring(gi):
        A(f"""
        s_add_u32 s26, s36, {gi}
        s_and_b32 s26, s26, 7
        s_mul_i32 s26, s26, {SLOT}
        s_add_u32 m0, s46, {L_RING + (gi & 1)*SLOT}
        s_add_u32 s26, s26, s46
        """)
        for r in range(4): A(f"buffer_load_dwordx4 v{vL16}, s[8:11], s26 offen offset:{r*1024} lds")
        A(f"""
        s_add_u32 m0, s46, {L_RING + (gi & 1)*SLOT + 4096}
        s_add_u32 s26, s26, 4096
        buffer_load_dwordx4 v{vL16}, s[8:11], s26 offen lds
        buffer_load_dword v{vL4}, s[8:11], s26 offen offset:1024 lds
        """)
    A(f"""
    v_bfe_u32 v{vTR}, v{lane}, 2, 2
    v_lshl_add_u32 v{vTR}, v{hg}, 3, v{vTR}
    v_lshlrev_b32 v{vTR}, 4, v{vTR}
    v_and_b32 v7, 1, v{lane}
    v_lshl_add_u32 v{vTR}, v7, 3, v{vTR}
    v_bfe_u32 v7, v{lane}, 1, 1
    v_mul_u32_u24 v7, 10240, v7
    s_mul_i32 s26, s34, 2560
    v_add3_u32 v{vTR}, v{vTR}, v7, s26
    s_lshl_b32 s26, s34, 9
    s_add_u32 s26, s26, {L_P}
    v_add_u32 v{vP}, s26, v{vL8}
    s_mul_i32 s26, s34, {2*TB}
    s_add_u32 s26, s26, {L_RING}
    v_add_u32 v{vKa}, s26, v{vL16}
    v_and_b32 v{vKb}, 31, v{lane}
    v_lshlrev_b32 v{vKb}, 3, v{vKb}
    v_add_u32 v{vKb}, s26, v{vKb}
    v_mov_b32 v{KN}, 0
    """)
    knorm(0)
    A("""
    s_waitcnt lgkmcnt(0)
    s_barrier
    """)
    gts(1)
    ring(2)
    wo_block(4, P1)
    knorm(1)
    A(f"""
    s_cmp_eq_u32 s34, 3
    s_cbranch_scc1 KF_NGW3
    """)
    for j in range(GS[1], 7): gu(j)
    A(f"""
    s_lshl_b32 s26, s34, 10
    v_add_u32 v7, s26, v{vL16}
    s_min_u32 s26, s26, 1024
    v_add_u32 v6, s26, v{vL16}
    s_waitcnt vmcnt({7-GS[1]})
    """)
    for j in range(7):
        if j >= GS[1]: A(f"s_waitcnt vmcnt({6-j})")
        A(f"ds_write_b128 v{7 if j < 6 else 6}, {vr(GUV+4*j,4)} offset:{L_W + j*3072}")
    A.label("KF_NGW3")
    A(f"""
    v_cmp_eq_u32 vcc, 1, v{hl15}
    v_mov_b32 v7, 0x3f803f80
    s_waitcnt vmcnt(0)
    """)
    for r in range(20): A(f"v_cndmask_b32 v{XFh+r}, v{XFh+r}, v7, vcc")
    A("s_waitcnt lgkmcnt(0)\ns_barrier")
    gts(2)
    ring(3)
    wo_block(8, P1)
    knorm(2)
    for i in range(5):
        b = BF + 4 * (i & 1)
        A(f"""
        ds_read_b64_tr_b16 {vr(b,2)}, v{vTR} offset:{i*512}
        ds_read_b64_tr_b16 {vr(b+2,2)}, v{vTR} offset:{i*512+64}
        s_waitcnt lgkmcnt(0)
        """)
        mf16(hACC, XFh + 4*i, b, i == 0)
    A(f"""
    v_lshlrev_b32 v7, 3, v{hl15}
    v_add_u32 v7, {L_P}, v7
    ds_write_b64 v{vP}, {vr(hACC,2)}
    s_waitcnt vmcnt(0) lgkmcnt(0)
    s_barrier
    """)
    gts(3)
    ring(4)
    wo_block(0, P1)
    knorm(3)
    for i in range(4): A(f"ds_read_b64 {vr(TT+2*i,2)}, v7 offset:{i*512}")
    A(f"""
    s_mov_b32 s26, 0x05040100
    s_mov_b32 s27, 0x07060302
    s_mul_i32 s39, s39, 2560
    s_mul_i32 s28, s34, 640
    s_add_u32 s39, s39, s28
    s_add_u32 s39, s39, {F_YP}
    s_waitcnt lgkmcnt(0)
    v_add_f32 v{TT}, v{TT}, v{TT+2}
    v_add_f32 v{TT+1}, v{TT+1}, v{TT+3}
    v_add_f32 v{TT+4}, v{TT+4}, v{TT+6}
    v_add_f32 v{TT+5}, v{TT+5}, v{TT+7}
    v_add_f32 v{TT}, v{TT}, v{TT+4}
    v_add_f32 v{TT+1}, v{TT+1}, v{TT+5}
    v_fma_f32 v{TT}, -v{ST}, v{TT+1}, v{TT}
    v_mul_f32 v{TT}, v{TT}, v{ST+1}
    """)
    rbf(A, TT, TT)
    A(f"""
    v_mul_f32 v{TT+1}, {f32(-LOG2E)}, v{TT}
    v_exp_f32 v{TT+1}, v{TT+1}
    v_mov_b32_dpp v{TT+2}, v{TT} row_ror:8 row_mask:0xf bank_mask:0xf
    v_add_f32 v{TT+1}, 1.0, v{TT+1}
    v_rcp_f32 v{TT+1}, v{TT+1}
    v_mul_f32 v{TT+1}, v{TT+1}, v{TT}
    """)
    rbf(A, TT+1, TT+1)
    A(f"""
    v_mul_f32 v{TT+1}, v{TT+1}, v{TT+2}
    v_cvt_pk_bf16_f32 v{TT+1}, v{TT+1}, v{TT+1}
    """)
    for f in range(8): A(f"v_readlane_b32 s{48+f}, v{TT+1}, {f}")
    for fp in range(4): A(f"s_pack_hh_b32_b16 s{48+fp}, s{48+2*fp}, s{49+2*fp}")
    for fp in range(4):
        r0, r1 = WD + 4*fp, WD + 4*fp + 2
        for c in range(4):
            A(f"v_perm_b32 v{TT+4+c}, v{r1+(c>>1)}, v{r0+(c>>1)}, s{26+(c&1)}")
        for c in range(4):
            A(f"v_dot2_f32_bf16 v{Y+c}, v{TT+4+c}, s{48+fp}, {'0' if fp == 0 else f'v{Y+c}'}")
    A(f"""
    s_mov_b32 exec_hi, 0xff
    s_waitcnt vmcnt(0)
    buffer_store_dwordx4 {vr(Y,4)}, v{vL16}, s[8:11], s39 offen sc1
    s_mov_b32 exec_hi, -1
    s_getreg_b32 s28, hwreg(HW_REG_XCC_ID)
    s_and_b32 s28, s28, 15
    s_add_u32 s28, s28, 1
    v_mov_b32 v7, s28
    s_lshl_b32 s29, s32, 5
    s_add_u32 s29, s29, {F_YF}
    s_lshl_b32 s30, s33, 2
    s_add_u32 s30, s30, s29
    s_cmp_eq_u32 s34, 0
    s_cselect_b32 s31, 0, 0x40000000
    v_mov_b32 v5, s31
    s_barrier
    """)
    gts(5)
    ring(5)
    wo_block(12, P1)
    knorm(4)
    A(f"""
    s_waitcnt vmcnt(0)
    s_barrier
    s_mov_b64 exec, 1
    buffer_store_dword v7, v5, s[8:11], s30 offen sc1
    s_mov_b64 exec, -1
    """)
    gts(6)
    ring(6)
    wo_block(16, P2)
    knorm(5)
    A(f"""
    s_cmp_eq_u32 s42, s32
    s_cselect_b32 s31, 1, 0
    s_cselect_b32 s30, {F_YF}, s29
    s_cselect_b32 s26, 63, 1
    v_and_b32 v5, s26, v{lane}
    v_lshlrev_b32 v5, 4, v5
    v_and_b32 v9, 7, v{lane}
    v_lshlrev_b32 v9, 2, v9
    s_mov_b32 s47, {TIMEOUT}
    s_waitcnt vmcnt(0)
    s_barrier
    """)
    ring(7)
    knorm(6)
    A.label("KF_POLL2")
    A(f"""
    buffer_load_dwordx4 {vr(TT,4)}, v5, s[8:11], s30 offen sc1
    buffer_load_dword v{TT+4}, v9, s[8:11], s29 offen sc1
    s_sub_u32 s47, s47, 1
    s_cbranch_scc1 KF_GO2
    s_waitcnt vmcnt(0)
    v_min3_u32 v{TT}, v{TT}, v{TT+1}, v{TT+2}
    v_min3_u32 v{TT}, v{TT}, v{TT+3}, v{TT+4}
    v_cmp_ne_u32 vcc, 0, v{TT}
    s_cmp_eq_u64 vcc, -1
    s_cbranch_scc0 KF_POLL2
    """)
    A.label("KF_GO2")
    vy = 10
    A(f"""
    s_waitcnt vmcnt(0)
    v_cmp_eq_u32 vcc, s28, v{TT+4}
    s_cmp_eq_u64 vcc, -1
    s_cselect_b32 s26, 1, 0
    v_mov_b32 v{TT}, s26
    v_mov_b32 v{TT+1}, s45
    v_mov_b32 v7, {L_FLG}
    ds_write_b64 v7, {vr(TT,2)} offset:32
    s_cmp_eq_u32 s31, 0
    s_cbranch_scc1 KF_NS1
    v_mul_u32_u24 v5, 3277, v{lane}
    v_lshrrev_b32 v5, 16, v5
    v_mul_u32_u24 v7, 20, v5
    v_sub_u32 v7, v{lane}, v7
    v_min_u32 v5, 2, v5
    s_mul_i32 s26, s34, 3
    v_add_u32 v5, s26, v5
    v_mul_u32_u24 v{vy}, 320, v5
    v_lshl_add_u32 v{vy}, v7, 4, v{vy}
    v_add_u32 v{vy}, {L_Y}, v{vy}
    v_mul_u32_u24 v5, 2560, v5
    v_lshl_add_u32 v5, v7, 4, v5
    s_lshl_b32 s26, s35, 1
    s_add_u32 s26, s26, {F_YP}
    """)
    for i in range(18):
        A(f"""
        buffer_load_dwordx4 {vr(YL+4*i,4)}, v5, s[8:11], s26 offen
        s_add_u32 s26, s26, {12*2560}
        """)
    A(f"""
    s_add_u32 s26, s40, s35
    buffer_load_dword v{SP}, v{vL4}, s[4:7], s26 offen
    s_waitcnt vmcnt(1)
    """)
    for i in range(1, 18):
        A(f"v_pk_add_f32 {p2(YL)}, {p2(YL)}, {p2(YL+4*i)}")
        A(f"v_pk_add_f32 {p2(YL+2)}, {p2(YL+2)}, {p2(YL+4*i+2)}")
    A(f"ds_write_b128 v{vy}, {vr(YL,4)}")
    A.label("KF_NS1")
    A(f"""
    s_waitcnt vmcnt(0) lgkmcnt(0)
    s_barrier
    """)
    A(f"""
    s_cmp_eq_u32 s34, 0
    s_cselect_b32 s31, s31, 0
    s_cmp_eq_u32 s31, 0
    s_cbranch_scc1 KF_NS2
    v_add_u32 v{vy}, {L_Y}, v{vL8}
    v_mov_b32 v{hCST}, {f32(-LOG2E)}
    v_mov_b32 v{hCST+1}, 1.0
    """)
    for i in range(12): A(f"ds_read_b64 {p2(YL+2*i)}, v{vy} offset:{i*320}")
    A(f"""
    s_lshr_b32 s26, s44, 16
    s_bitcmp1_b32 s44, 31
    s_cselect_b32 s27, 0x8000, -1
    s_xor_b32 s26, s26, s27
    s_lshl_b32 s26, s26, 16
    v_mul_f32 v{SP+4}, s26, v{hCST}
    v_exp_f32 v{SP+4}, v{SP+4}
    v_add_f32 v{SP+4}, 1.0, v{SP+4}
    v_rcp_f32 v{SP+4}, v{SP+4}
    """)
    rbf(A, SP+4, SP+4)
    unpack(SP+6, SP)
    A("s_waitcnt lgkmcnt(0)")
    for i in range(1, 12): A(f"v_pk_add_f32 {p2(YL)}, {p2(YL)}, {p2(YL+2*i)}")
    A(f"v_cvt_pk_bf16_f32 v{YL}, v{YL}, v{YL+1}")
    unpack(YL, YL)
    A(f"v_pk_mul_f32 {p2(YL)}, {p2(YL)}, {p2(SP+4)} op_sel_hi:[1,0]")
    A(f"v_cvt_pk_bf16_f32 v{YL}, v{YL}, v{YL+1}")
    unpack(YL, YL)
    gpair(hCST, SP+6, ST, SP+8, SP+10, SP+12, y=YL)
    A(f"""
    v_add_u32 v{vy}, {L_G2}, v{vL4}
    ds_write_b32 v{vy}, v{SP+8}
    """)
    A.label("KF_NS2")
    WF = 16; AC = 116; OFh = 196
    if P3H:
        assert not SWE
        A(f"""
        v_lshrrev_b32 v4, 2, v{lane}
        v_mul_u32_u24 v4, 160, v4
        v_and_b32 v5, 3, v{lane}
        v_lshl_add_u32 v4, v5, 3, v4
        s_mul_i32 s26, s34, 5120
        s_add_u32 s27, s26, 81920
        v_add_u32 v5, s27, v4
        s_lshl_b32 s26, s26, 2
        v_add_u32 v4, s26, v4
        """)
        for k in range(5):
            for i in range(5):
                A(f"ds_read_b64_tr_b16 {vr(WF+20*k+4*i,2)}, v{4 if k < 4 else 5} offset:{L_W + (k%4)*5120 + i*32}")
                A(f"ds_read_b64_tr_b16 {vr(WF+20*k+4*i+2,2)}, v{4 if k < 4 else 5} offset:{L_W + (k%4)*5120 + i*32 + 2560}")
            A("s_waitcnt lgkmcnt(5)")
        A(f"""
        v_lshlrev_b32 v5, 4, v{lane}
        s_mul_i32 s26, s34, 20480
        v_add_u32 v8, s26, v5
        v_bfe_u32 v6, v{lane}, 3, 2
        v_lshlrev_b32 v6, 7, v6
        v_and_b32 v7, 7, v{lane}
        v_lshl_add_u32 v6, v7, 2, v6
        s_lshl_b32 s42, s32, 9
        s_add_u32 s42, s42, {F_OF}
        s_mul_i32 s43, s32, 81920
        s_lshl_b32 s26, s34, 12
        s_add_u32 s43, s43, s26
        s_add_u32 s43, s43, {F_O}
        s_mul_i32 s28, s34, 3072
        s_sub_u32 s28, 16384, s28
        s_lshl_b32 s26, s34, 1
        s_lshl_b32 s30, 0x03030303, s26
        s_mov_b32 s31, s30
        s_mov_b32 s47, {TIMEOUT}
        """)
        if DRY:
            A("""
            s_mov_b32 s27, s43
            s_mov_b64 exec, 0
            s_branch KF_GO3D
            """)
            A.label("KF_DRYRET")
            A("s_mov_b64 exec, -1\ns_mov_b32 s43, s27")
    if not SWE: A(f"""
    s_waitcnt vmcnt(0) lgkmcnt(0)
    s_barrier
    """)
    if P3H:
        A.label("KF_POLL3")
        A(f"""
        buffer_load_dword v7, v6, s[8:11], s42 offen sc1
        s_sub_u32 s47, s47, 1
        s_cbranch_scc1 KF_GO3
        s_waitcnt vmcnt(0)
        v_cmp_ne_u32 vcc, 0, v7
        s_and_b64 vcc, vcc, s[30:31]
        s_cmp_eq_u64 vcc, s[30:31]
        s_cbranch_scc0 KF_POLL3
        """)
        A.label("KF_GO3")
        A("s_waitcnt vmcnt(0)")
        ts_mark(A, 6)
        A.label("KF_GO3D")
        def ld3(t):
            for k in range(5):
                if k == 4: A("s_add_u32 s26, s43, s28")
                A(f"buffer_load_dwordx4 {vr(OFh+4*((5*t+k)%15),4)}, v5, s[8:11], s{26 if k == 4 else 43} offen offset:{(k%4)*1024}")
            A("s_add_u32 s43, s43, 20480")
        def wr3(t):
            for i in range(5): A(f"ds_write_b128 v8, {vr(AC+20*t+4*i,4)} offset:{L_W + (t*5+i)*1024}")
        for t in range(3): ld3(t)
        for t in range(4):
            for k in range(5):
                iss = 15 if t == 0 else 20
                A(f"s_waitcnt vmcnt({iss - (5*t+k) - 1})")
                if DRY: A(f"s_cbranch_execz KF_SK{t}_{k}")
                for i in range(5): mf16(AC+20*t+4*i, WF+20*k+4*i, OFh+4*((5*t+k)%15), k == 0)
                if DRY: A.label(f"KF_SK{t}_{k}")
                if k == 1 and t: wr3(t-1)
            if t == 0: ld3(3)
        A("s_nop 7\ns_nop 7")
        A("s_waitcnt lgkmcnt(5)")
        wr3(3)
        if DRY: A("s_cbranch_execz KF_DRYRET")
        A("s_waitcnt lgkmcnt(0)\ns_barrier")
    if SWE:
        knorm(7)
        for sh in (8, 4, 2, 1):
            A(f"v_max_f32_dpp v{KN}, v{KN}, v{KN} row_ror:{sh} row_mask:0xf bank_mask:0xf")
        A(f"""
    v_mov_b32 v{KN+1}, v{KN}
    v_permlane16_swap_b32 v{KN}, v{KN+1}
    v_max_f32 v{KN}, v{KN}, v{KN+1}
    v_mov_b32 v{KN+1}, v{KN}
    v_permlane32_swap_b32 v{KN}, v{KN+1}
    v_add_f32 v{KN}, v{KN}, v{KN+1}
    s_lshl_b32 s26, s34, 2
    s_add_u32 s26, s26, {L_FLG+48}
    v_mov_b32 v{KN+1}, s26
    ds_write_b32 v{KN+1}, v{KN}
    s_waitcnt lgkmcnt(0)
    s_barrier
        """)
    ts_end(A, 8)
    if HD and not P3H: A("s_mov_b64 exec, 0\ns_branch KF_GO3X")
    A.label("KF_END")
    A("s_endpgm")
    return A, LDS, 256
```
